```python
import torch

def _softmax(x, axis=-1):
    return torch.softmax(x, dim=axis)
def _gelu(x):
    return torch.nn.functional.gelu(x, approximate="tanh")
def _silu(x):
    return torch.nn.functional.silu(x)
def _sigmoid(x):
    return torch.sigmoid(x)
def _layernorm(x, axis=-1, eps=1e-5):
    m = x.mean(dim=axis, keepdim=True)
    v = x.var(dim=axis, keepdim=True, unbiased=False)
    return (x - m) / torch.sqrt(v + eps)
def _scatter_add(tgt, idx, src, axis=0):
    return tgt.clone().index_add_(axis, idx, src)
def _segment_sum(src, seg, n):
    out = torch.zeros((n,) + src.shape[1:], dtype=src.dtype)
    return out.index_add_(0, seg, src)
def _pad(x, pw):
    flat = tuple(v for pair in reversed(pw) for v in pair)
    return torch.nn.functional.pad(x, flat)

kernel_name = 'standalone__modern_conv_block_slak__vision'

def setup_inputs():

    _w = (lambda a: (lambda t: t.to(torch.bfloat16) if t.is_floating_point() else t)(torch.as_tensor(a)))
    H = W = 384
    C = 96
    K = 3
    return {
        "x": _w((lambda *s: torch.randn(*s, dtype=torch.bfloat16) * 0.05)(1, H, W, C)),
        "dw": _w((lambda *s: torch.randn(*s, dtype=torch.bfloat16) * 0.05)(K, K, C)),
        "w1": _w((lambda *s: torch.randn(*s, dtype=torch.bfloat16) * 0.05)(C, 4 * C)),
        "w2": _w((lambda *s: torch.randn(*s, dtype=torch.bfloat16) * 0.05)(4 * C, C)),
        "grn_g": _w((lambda *s: torch.randn(*s, dtype=torch.bfloat16) * 0.05)(4 * C)),
        "grn_b": _w((lambda *s: torch.randn(*s, dtype=torch.bfloat16) * 0.05)(4 * C)),
    }

def reference(x, dw, w1, w2, grn_g, grn_b):
    B, H, W, C = x.shape
    K = dw.shape[0]
    pad = K // 2
    xp = _pad(x, ((0,0),(pad,pad),(pad,pad),(0,0)))
    out = torch.zeros_like(x)
    for i in range(K):
        for j in range(K):
            out = out + xp[:, i:i+H, j:j+W, :] * dw[i, j][None, None, None, :]
    h = _layernorm(out, axis=-1)
    h = _gelu(h @ w1)
    gx = torch.sqrt((h * h).sum(axis=(1, 2), keepdims=True) + 1e-6)
    nx = gx / (gx.mean(axis=-1, keepdims=True) + 1e-6)
    h = grn_g[None, None, None, :] * (h * nx) + grn_b[None, None, None, :] + h
    return x + h @ w2
```

```python
import re

TRANS = ("v_exp_f32", "v_log_f32", "v_rcp_f32", "v_rsq_f32", "v_sqrt_f32", "v_sin_f32", "v_cos_f32")


def _split_ops(s):
    out, depth, cur = [], 0, ""
    for ch in s:
        if ch in "[(":
            depth += 1
        elif ch in "])":
            depth -= 1
        if ch == "," and depth == 0:
            out.append(cur.strip())
            cur = ""
        else:
            cur += ch
    if cur.strip():
        out.append(cur.strip())
    return out


_R1 = re.compile(r"^-?\|?([vsa])(\d+)\|?$")
_RN = re.compile(r"^-?([vsa])\[(\d+):(\d+)\]$")


def regs_of(op):
    op = op.split()[0] if op else op
    m = _R1.match(op)
    if m:
        return [(m.group(1), int(m.group(2)))]
    m = _RN.match(op)
    if m:
        return [(m.group(1), i) for i in range(int(m.group(2)), int(m.group(3)) + 1)]
    if op in ("vcc",):
        return [("vcc", 0), ("vcc", 1)]
    if op == "vcc_lo":
        return [("vcc", 0)]
    if op == "vcc_hi":
        return [("vcc", 1)]
    if op == "exec":
        return [("exec", 0), ("exec", 1)]
    if op == "exec_lo":
        return [("exec", 0)]
    if op == "exec_hi":
        return [("exec", 1)]
    if op == "m0":
        return [("m0", 0)]
    return []


class Ins:
    __slots__ = ("text", "mn", "kind", "rd", "wr", "ops", "states", "passes", "srcc", "srcab", "wide")


def parse(text):
    t = text.split(";")[0].strip()
    parts = t.split(None, 1)
    mn = parts[0]
    ops = _split_ops(parts[1]) if len(parts) > 1 else []
    i = Ins()
    i.text, i.mn, i.ops = text, mn, ops
    i.rd, i.wr = set(), set()
    i.states = 1
    i.passes = 0
    i.srcc = set()
    i.srcab = set()
    i.wide = False
    base = re.sub(r"_(e32|e64|dpp|sdwa)$", "", mn)
    R = [regs_of(o) for o in ops]
    if mn.startswith("v_mfma"):
        i.kind = "mfma"
        i.passes = 8 if "32x32x16" in mn else 4
        assert "32x32x16_bf16" in mn or "16x16x32_bf16" in mn, mn
        i.wr = set(R[0])
        i.srcab = set(R[1]) | set(R[2])
        i.srcc = set(R[3])
        i.rd = i.srcab | i.srcc
    elif mn.startswith("v_"):
        i.kind = "valu"
        if base in TRANS:
            i.kind = "trans"
        if base.startswith("v_dot"):
            i.kind = "dot"
        if base.startswith("v_permlane"):
            i.kind = "permlane"
            i.wr = set(R[0]) | set(R[1])
            i.rd = set(i.wr)
        else:
            i.wr = set(R[0])
            for r in R[1:]:
                i.rd |= set(r)
            if base in ("v_fmac_f32", "v_dot2c_f32_bf16") or mn.endswith("_dpp") or mn.endswith("_sdwa"):
                i.rd |= set(R[0])
            if base.startswith("v_cndmask") and len(ops) == 3:
                i.rd |= {("vcc", 0), ("vcc", 1)}
            if i.kind == "dot" and len(ops) == 4:
                i.srcc = set(R[3])
                i.srcab = set(R[1]) | set(R[2])
            if base == "v_dot2c_f32_bf16":
                i.srcc = set(R[0])
                i.srcab = set(R[1]) | set(R[2])
    elif mn.startswith("ds_"):
        i.kind = "ds"
        if mn.startswith("ds_read"):
            i.wr = set(R[0])
            for r in R[1:]:
                i.rd |= set(r)
            if "d16" in mn:
                i.rd |= set(R[0])
        else:
            for r in R:
                i.rd |= set(r)
    elif mn.startswith("buffer_") or mn.startswith("global_"):
        i.kind = "vmem"
        is_lds = re.search(r"\blds\b", t) is not None
        if "_load" in mn and not is_lds:
            i.wr = set(R[0])
            for r in R[1:]:
                i.rd |= set(r)
            if "d16" in mn:
                i.rd |= set(R[0])
        elif "atomic" in mn and re.search(r"\bsc0\b", t):
            i.wr = set(R[0])
            for r in R[1:]:
                i.rd |= set(r)
        else:
            for r in R:
                i.rd |= set(r)
            if is_lds:
                i.rd.add(("m0", 0))
                i.kind = "vmem_lds"
            if "store" in mn and ("x3" in mn or "x4" in mn):
                i.wide = True
    elif mn.startswith("s_load") or mn.startswith("s_mem"):
        i.kind = "smem"
        i.wr = set(R[0])
        for r in R[1:]:
            i.rd |= set(r)
    elif mn.startswith("s_"):
        i.kind = "salu"
        if mn == "s_nop":
            i.states = int(ops[0], 0) + 1
        elif mn.startswith(("s_cmp", "s_cbranch", "s_branch", "s_barrier", "s_waitcnt", "s_setprio", "s_sleep",
                            "s_endpgm", "s_bitcmp")):
            for r in R:
                i.rd |= set(r)
        else:
            i.wr = set(R[0])
            for r in R[1:]:
                i.rd |= set(r)
            if "saveexec" in mn:
                i.wr |= {("exec", 0), ("exec", 1)}
    else:
        raise ValueError("unknown instruction: " + text)
    return i


VALU_KINDS = ("valu", "trans", "dot", "permlane")


def _need(prev, cur):
    n = 0
    pv = prev.kind in VALU_KINDS
    cv = cur.kind in VALU_KINDS
    cmem = cur.kind in ("ds", "vmem", "vmem_lds")
    pw_v = {r for r in prev.wr if r[0] in "va"}
    pw_s = {r for r in prev.wr if r[0] in ("s", "vcc")}
    if pv:
        if cur.kind == "mfma" and pw_v & cur.rd:
            n = max(n, 3 if prev.kind == "dot" else 2)
        if prev.kind == "trans" and cv and cur.kind != "trans" and pw_v & cur.rd:
            n = max(n, 1)
        if cur.kind == "permlane" and pw_v & cur.rd:
            n = max(n, 2)
        if cur.mn.endswith("_dpp") and pw_v & cur.rd:
            n = max(n, 2)
        if cur.mn.startswith(("v_readfirstlane", "v_readlane")) and pw_v & cur.rd:
            n = max(n, 1)
        if pw_s:
            if cv and pw_s & cur.rd:
                n = max(n, 4 if cur.mn.startswith(("v_readlane", "v_writelane")) else 2)
            if cur.kind in ("vmem", "vmem_lds") and pw_s & cur.rd:
                n = max(n, 5)
            if cur.kind in ("salu", "smem") and pw_s & cur.rd:
                n = max(n, 1)
        if prev.mn.endswith("_sdwa") and cv and pw_v & (cur.rd | cur.wr):
            n = max(n, 1)
        if prev.kind == "dot":
            same = cur.kind == "dot" and cur.mn == prev.mn
            if same:
                if pw_v & cur.srcab:
                    n = max(n, 3)
            elif (cv or cmem) and pw_v & (cur.rd | cur.wr):
                n = max(n, 3)
    if prev.kind == "mfma":
        p = prev.passes
        big = {4: 8, 8: 12}[p]
        if cur.kind == "mfma":
            if prev.wr & cur.srcab:
                n = max(n, big)
            if prev.wr & cur.srcc:
                if not (prev.wr == cur.srcc and cur.passes == p):
                    n = max(n, {4: 6, 8: 10}[p])
            elif prev.wr & cur.wr:
                n = max(n, {4: 6, 8: 10}[p])
        elif cv or cmem:
            if prev.wr & (cur.rd | cur.wr):
                n = max(n, big)
            if cv and prev.srcc & cur.wr:
                n = max(n, {4: 3, 8: 7}[p])
    if prev.kind == "salu":
        if ("m0", 0) in prev.wr and cur.kind == "vmem_lds":
            n = max(n, 1)
    if prev.wide and (cv or cur.kind in ("ds", "vmem", "mfma")):
        data = {r for r in prev.rd if r[0] == "v"}
        if data & cur.wr:
            n = max(n, 2)
    return n


class Asm:
    def __init__(self):
        self.out = []
        self.hist = []
        self.lgkm = []
        self.vm = []
        self.smem_pending = set()
        self.nops = 0
        self.count = {}
        self.maxv = 0

    def raw(self, text):
        self.out.append(text)

    def comment(self, text):
        self.out.append("    ; " + text)

    def _push(self, ins):
        self.out.append("    " + ins.text)
        self.hist.append(ins)
        if len(self.hist) > 32:
            self.hist.pop(0)
        self.count[ins.kind] = self.count.get(ins.kind, 0) + 1
        for r in ins.rd | ins.wr:
            if r[0] == "v":
                self.maxv = max(self.maxv, r[1])

    def _wait(self, vm=None, lgkm=None):
        parts = []
        if vm is not None:
            assert 0 <= vm <= 63
            parts.append(f"vmcnt({vm})")
            del self.vm[: max(0, len(self.vm) - vm)]
        if lgkm is not None:
            assert 0 <= lgkm <= 15
            parts.append(f"lgkmcnt({lgkm})")
            del self.lgkm[: max(0, len(self.lgkm) - lgkm)]
            if lgkm == 0:
                self.smem_pending = set()
        self._push(parse("s_waitcnt " + " ".join(parts)))

    def wait(self, vm=None, lgkm=None):
        self._wait(vm, lgkm)

    def wait_vm_tag(self, tag):
        idx = [k for k, (_, t) in enumerate(self.vm) if t == tag]
        if idx:
            self._wait(vm=len(self.vm) - 1 - idx[-1])

    def __call__(self, text, tag=None):
        ins = parse(text)
        touched = ins.rd | ins.wr
        need_l = None
        for k, d in enumerate(self.lgkm):
            if d & touched:
                need_l = len(self.lgkm) - 1 - k
        if self.smem_pending & touched:
            need_l = 0
        if need_l is not None and self.smem_pending:
            need_l = 0
        need_v = None
        for k, (d, _) in enumerate(self.vm):
            if d & touched:
                need_v = len(self.vm) - 1 - k
        if ins.kind == "ds" and len(self.lgkm) >= 15 and need_l is None:
            need_l = 14
        if ins.kind in ("vmem", "vmem_lds") and len(self.vm) >= 63 and need_v is None:
            need_v = 62
        if need_l is not None and need_l > 15:
            need_l = 15
        if need_l is not None or need_v is not None:
            self._wait(need_v, need_l)
        dist, need = 0, 0
        for prev in reversed(self.hist):
            n = _need(prev, ins)
            need = max(need, n - dist)
            dist += prev.states
            if dist >= 20:
                break
        while need > 0:
            k = min(need, 16)
            self._push(parse(f"s_nop {k - 1}"))
            self.nops += k
            need -= k
        self._push(ins)
        if ins.kind == "ds":
            self.lgkm.append(set(ins.wr))
        elif ins.kind in ("vmem", "vmem_lds"):
            self.vm.append((set(ins.wr), tag))
        elif ins.kind == "smem":
            self.smem_pending |= ins.wr
            self.smem_pending.add(("smem", 0))

    def label(self, name):
        self.out.append(f"{name}:")

    def settle(self):
        self._push(parse("s_nop 15"))
        self._push(parse("s_nop 3"))

    def barrier(self, vm=None):
        self._wait(vm=vm, lgkm=0)
        self._push(parse("s_barrier"))

    def snapshot(self):
        return (list(self.lgkm), list(self.vm), set(self.smem_pending))

    def restore(self, snap):
        self.lgkm, self.vm, self.smem_pending = list(snap[0]), list(snap[1]), set(snap[2])

    def text(self):
        return "\n".join(self.out) + "\n"


def V(a, n=1):
    return f"v{a}" if n == 1 else f"v[{a}:{a + n - 1}]"


def S(a, n=1):
    return f"s{a}" if n == 1 else f"s[{a}:{a + n - 1}]"
```

```python
import math
import struct
import sys

from asmlib import Asm, S, V

NAME = "standalone__modern_conv_block_slak__vision"
XB = 28311552

W_OFF = 0
RING = 73728
ROWB = 7168
DWT = RING + 10 * ROWB
ZERO = DWT + 36 * 400
SUM = ZERO + 256
TOT = SUM + 1536
BIAS = TOT + 1536
LDS_END = BIAS + 384
HSH = RING
HOV = HSH + 24 * 2048
assert HOV + 8 * 4096 <= ZERO
LDS_BYTES = 163840


def f2u(x):
    return struct.unpack("<I", struct.pack("<f", x))[0]


C1 = 2.0 * math.sqrt(2.0 / math.pi) * math.log2(math.e)
C2 = C1 * 0.044715
AS = C2 ** (1.0 / 3.0)
CC = C1 / AS

vLANE = 1
vAA = 2
vAB = 3
vWLO, vWHI = 6, 7
vSUMA = 8
vDMA = 9
vT0 = 10
vSQ = 11
vT1, vT2, vT3, vT4 = 12, 13, 14, 15
vG = 16
vF = 24
vD = (36, 52)
vY = 68
vH1 = 92
vH2 = 188
vCACC = 20
vCBUF = 188
vHSH = 228
vSP = 252

sW = 3
sB = 4
sSTRIP, sROW0, sBASE0, sCROSS = 5, 6, 7, 8
sRINGW = 11
sX, sDW, sW1, sW2, sG, sBB, sOUT, sDBG, sWS = 16, 18, 20, 22, 24, 26, 28, 30, 32
sCC = 34
srdX, srdW1, srdW2, srdO = 36, 40, 44, 48
sTB = (54, 52, 53)
sM0, sM1, sM2 = 56, 58, 60
sREP = 64
sREPW = 66
sINIT = 68
sTS = 70


def h2reg(g):
    if g == 0:
        return vD[0] + 8
    if g == 1:
        return vD[1] + 8
    if g == 10:
        return vD[0]
    if g == 11:
        return vD[1]
    return vH2 + 8 * (g - 2)


class Gen:
    def __init__(self, debug=None, stamps=False, opts=None):
        self.a = Asm()
        self.debug = debug
        self.stamps = stamps
        self.nts = 0
        self.opts = opts or {}

    def stamp(self):
        if self.stamps:
            assert self.nts < 15
            self.a.wait(lgkm=0)
            self.a(f"s_memtime {S(sTS + 2 * self.nts, 2)}")
            self.a.wait(lgkm=0)
            self.nts += 1

    def dma_rows(self, rows, tag):
        a = self.a
        a("s_mov_b32 exec_hi, 0x00ffffff")
        for rho in rows:
            a(f"s_add_u32 s9, {S(sBASE0)}, {rho * 73728}")
            a(f"s_sub_u32 s10, s9, {384 * 73728 - 6144}")
            a(f"s_cmp_le_u32 {S(sCROSS)}, {rho}")
            a("s_cselect_b32 s9, s10, s9")
            a(f"s_add_u32 m0, {S(sRINGW)}, {(rho % 10) * ROWB}")
            a(f"v_add_u32 {V(vT0)}, s9, {V(vDMA)}")
            a(f"buffer_load_dwordx4 {V(vT0)}, {S(srdX, 4)}, 0 offen nt lds", tag=tag)
        a("s_mov_b32 exec_hi, -1")

    def prologue(self):
        a = self.a
        a("s_cmp_ge_u32 s2, 256")
        a("s_cbranch_scc1 L_end")
        a(f"s_load_dwordx16 {S(16, 16)}, s[0:1], 0")
        a(f"s_load_dwordx2 {S(sWS, 2)}, s[0:1], 64")
        if self.stamps:
            a(f"s_memtime {S(sTS, 2)}")
            self.nts = 1
        a(f"v_and_b32 {V(vLANE)}, 63, v0")
        a(f"v_lshrrev_b32 {V(vT0)}, 6, v0")
        a(f"v_readfirstlane_b32 {S(sW)}, {V(vT0)}")
        a("s_and_b32 s9, s2, 7")
        a("s_lshl_b32 s9, s9, 5")
        a("s_lshr_b32 s10, s2, 3")
        a(f"s_add_u32 {S(sB)}, s9, s10")
        a(f"s_mul_i32 s9, {S(sB)}, 3")
        a(f"s_lshr_b32 {S(sSTRIP)}, s9, 6")
        a(f"s_mul_i32 s9, {S(sB)}, 18")
        a(f"s_mul_i32 s10, {S(sSTRIP)}, 384")
        a(f"s_sub_u32 {S(sROW0)}, s9, s10")
        a(f"s_mul_i32 s9, {S(sROW0)}, 73728")
        a(f"s_mul_i32 s10, {S(sSTRIP)}, 6144")
        a("s_add_u32 s9, s9, s10")
        a(f"s_sub_u32 {S(sBASE0)}, s9, {73728 + 192}")
        a(f"s_sub_u32 {S(sCROSS)}, 385, {S(sROW0)}")
        a(f"s_mul_i32 s9, {S(sW)}, 896")
        a(f"s_add_u32 {S(sRINGW)}, s9, {RING}")
        a(f"s_mul_i32 s9, {S(sW)}, 56")
        a(f"v_add_u32 {V(vT0)}, s9, {V(vLANE)}")
        a(f"v_mul_u32_u24 {V(vT1)}, 5042, {V(vT0)}")
        a(f"v_lshrrev_b32 {V(vT1)}, 16, {V(vT1)}")
        a(f"v_mul_u32_u24 {V(vT2)}, 13, {V(vT1)}")
        a(f"v_sub_u32 {V(vT2)}, {V(vT0)}, {V(vT2)}")
        a(f"v_mul_u32_u24 {V(vDMA)}, 192, {V(vT1)}")
        a(f"v_lshl_add_u32 {V(vDMA)}, {V(vT2)}, 4, {V(vDMA)}")
        a(f"v_cmp_lt_u32 vcc, 33, {V(vT1)}")
        a(f"v_cmp_eq_u32 {S(sM0, 2)}, 12, {V(vT2)}")
        a(f"s_or_b64 vcc, vcc, {S(sM0, 2)}")
        a(f"v_mov_b32 {V(vT3)}, 0x40000000")
        a(f"v_cndmask_b32 {V(vDMA)}, {V(vDMA)}, {V(vT3)}, vcc")
        for rnd in range(2):
            e, tap, c, ad, t = 16 + 6 * rnd, 17 + 6 * rnd, 18 + 6 * rnd, 19 + 6 * rnd, 20 + 6 * rnd
            if rnd == 0:
                a(f"v_mov_b32 {V(e)}, v0")
            else:
                a(f"v_add_u32 {V(e)}, 512, v0")
                a(f"v_min_u32 {V(e)}, 863, {V(e)}")
            a(f"v_mul_u32_u24 {V(tap)}, 683, {V(e)}")
            a(f"v_lshrrev_b32 {V(tap)}, 16, {V(tap)}")
            a(f"v_mul_u32_u24 {V(c)}, 96, {V(tap)}")
            a(f"v_sub_u32 {V(c)}, {V(e)}, {V(c)}")
            a(f"v_mul_u32_u24 {V(t)}, 11, {V(tap)}")
            a(f"v_lshrrev_b32 {V(t)}, 5, {V(t)}")
            a(f"v_mul_u32_u24 {V(ad)}, 400, {V(tap)}")
            a(f"v_mul_u32_u24 {V(t)}, {1200 - 128}, {V(t)}")
            a(f"v_sub_u32 {V(ad)}, {V(ad)}, {V(t)}")
            a(f"v_lshrrev_b32 {V(t)}, 3, {V(c)}")
            a(f"v_mul_u32_u24 {V(t)}, 1200, {V(t)}")
            a(f"v_add_u32 {V(ad)}, {V(ad)}, {V(t)}")
            a(f"v_and_b32 {V(c)}, 7, {V(c)}")
            a(f"v_lshl_add_u32 {V(ad)}, {V(c)}, 4, {V(ad)}")
            a(f"v_add_u32 {V(ad)}, {DWT}, {V(ad)}")
            a(f"v_lshl_add_u32 {V(c)}, {V(c)}, 1, {V(ad)}")
            a(f"v_lshlrev_b32 {V(e)}, 1, {V(e)}")
        for srd, p, n in ((srdX, sX, XB), (srdW1, sW1, 73728), (srdW2, sW2, 73728), (srdO, sOUT, XB)):
            a(f"s_mov_b32 {S(srd)}, {S(p)}")
            a(f"s_mov_b32 {S(srd + 1)}, {S(p + 1)}")
            a(f"s_mov_b32 {S(srd + 2)}, {n}")
            a(f"s_mov_b32 {S(srd + 3)}, 0x00020000")
        for r in range(28, 32):
            a(f"v_mov_b32 {V(r)}, 0")
        a("s_and_b32 s9, s2, 7")
        a("s_lshl_b32 s9, s9, 12")
        a(f"s_add_u32 {S(sREP)}, {S(sWS)}, s9")
        a(f"s_addc_u32 {S(sREP + 1)}, {S(sWS + 1)}, 0")
        a(f"s_lshl_b32 s9, {S(sW)}, 12")
        a(f"s_add_u32 {S(sREPW)}, {S(sWS)}, s9")
        a(f"s_addc_u32 {S(sREPW + 1)}, {S(sWS + 1)}, 0")
        a(f"s_lshr_b32 s9, s2, 3")
        a(f"s_or_b32 {S(sINIT)}, s9, {S(sW)}")
        a(f"s_cmp_lg_u32 {S(sINIT)}, 0")
        a("s_cbranch_scc1 L_noinit")
        snap = a.snapshot()
        a(f"v_lshlrev_b32 {V(vT1)}, 4, {V(vLANE)}")
        a(f"global_store_dwordx4 {V(vT1)}, v[28:31], {S(sREP, 2)} sc0 sc1")
        a(f"global_store_dwordx4 {V(vT1)}, v[28:31], {S(sREP, 2)} offset:1024 sc0 sc1")
        a(f"global_store_dwordx4 {V(vT1)}, v[28:31], {S(sREP, 2)} offset:2048 sc0 sc1")
        a.restore(snap)
        a.label("L_noinit")
        a(f"global_load_ushort v21, v16, {S(sDW, 2)}")
        a(f"global_load_ushort v27, v22, {S(sDW, 2)}")
        self.dma_rows(range(0, 4), "r0")
        a(f"s_and_b32 s12, {S(sW)}, 3")
        a(f"s_lshr_b32 s13, {S(sW)}, 2")
        a(f"s_mul_i32 s9, s12, {3 * 64}")
        a(f"s_mul_i32 s10, s13, {3 * 12288}")
        a("s_add_u32 s9, s9, s10")
        a(f"v_lshrrev_b32 {V(vT1)}, 2, {V(vLANE)}")
        a(f"v_mul_u32_u24 {V(vT1)}, 768, {V(vT1)}")
        a(f"v_and_b32 {V(vT2)}, 3, {V(vLANE)}")
        a(f"v_lshl_add_u32 {V(vT1)}, {V(vT2)}, 4, {V(vT1)}")
        a(f"v_add_u32 {V(vT1)}, s9, {V(vT1)}")
        a(f"s_mul_i32 s14, s12, {3 * 6144}")
        a(f"s_mul_i32 s10, s13, {3 * 1024}")
        a("s_add_u32 s15, s14, s10")
        for gi in range(3):
            for mi in range(3):
                a(f"s_add_u32 m0, s15, {W_OFF + gi * 6144 + mi * 1024}")
                a(f"s_mov_b32 s9, {mi * 12288 + gi * 64}")
                a(f"buffer_load_dwordx4 {V(vT1)}, {S(srdW1, 4)}, s9 offen lds", tag="w1")
        self.dma_rows(range(4, 10), "r1")
        a("ds_write_b128 v19, v[28:31]")
        a("ds_write_b128 v25, v[28:31]")
        nz = 36 + (LDS_END - ZERO) // 16
        a(f"v_min_u32 {V(vT1)}, {nz - 1}, v0")
        a(f"v_mul_u32_u24 {V(vT2)}, 400, {V(vT1)}")
        a(f"v_add_u32 {V(vT2)}, {DWT + 384}, {V(vT2)}")
        a(f"v_lshlrev_b32 {V(vT3)}, 4, {V(vT1)}")
        a(f"v_add_u32 {V(vT3)}, {ZERO - 36 * 16}, {V(vT3)}")
        a(f"v_cmp_gt_u32 vcc, 36, {V(vT1)}")
        a(f"v_cndmask_b32 {V(vT2)}, {V(vT3)}, {V(vT2)}, vcc")
        a(f"ds_write_b128 {V(vT2)}, v[28:31]")
        a(f"s_mov_b32 {S(sCC)}, {f2u(CC):#x}")
        a(f"s_mov_b32 {S(sCC + 1)}, {f2u(CC):#x}")
        a(f"v_lshrrev_b32 {V(vT1)}, 2, {V(vLANE)}")
        a(f"v_and_b32 {V(vT1)}, 1, {V(vT1)}")
        a(f"v_lshrrev_b32 {V(vT2)}, 4, {V(vLANE)}")
        a(f"v_sub_u32 {V(vT2)}, {V(vT2)}, {V(vT1)}")
        a(f"v_and_b32 {V(vT2)}, 3, {V(vT2)}")
        a(f"v_lshrrev_b32 {V(vT1)}, 1, {V(vLANE)}")
        a(f"v_and_b32 {V(vT1)}, 4, {V(vT1)}")
        a(f"v_and_b32 {V(vT3)}, 3, {V(vLANE)}")
        a(f"v_or_b32 {V(vT1)}, {V(vT1)}, {V(vT3)}")
        a(f"v_cmp_eq_u32 vcc, 3, {V(vT2)}")
        a(f"v_cndmask_b32 {V(vT1)}, {V(vT1)}, v28, vcc")
        a(f"v_lshlrev_b32 {V(vT2)}, 7, {V(vT2)}")
        a(f"v_lshl_add_u32 {V(vAA)}, {V(vT1)}, 4, {V(vT2)}")
        a(f"v_add_u32 {V(vAA)}, {DWT}, {V(vAA)}")
        a(f"v_lshrrev_b32 {V(vT1)}, 5, {V(vLANE)}")
        a(f"v_lshlrev_b32 {V(vWLO)}, 8, {V(vT1)}")
        a(f"v_bfe_u32 {V(vT1)}, {V(vLANE)}, 2, 2")
        a(f"v_lshl_add_u32 {V(vWLO)}, {V(vT1)}, 6, {V(vWLO)}")
        a(f"v_bfe_u32 {V(vT1)}, {V(vLANE)}, 4, 1")
        a(f"v_lshl_add_u32 {V(vWLO)}, {V(vT1)}, 5, {V(vWLO)}")
        a(f"v_lshl_add_u32 {V(vWLO)}, {V(vT3)}, 3, {V(vWLO)}")
        a(f"v_add_u32 {V(vWHI)}, s14, {V(vWLO)}")
        a(f"v_and_b32 {V(vT1)}, 31, {V(vLANE)}")
        a(f"v_lshlrev_b32 {V(vSUMA)}, 2, {V(vT1)}")
        a(f"s_mul_i32 s9, s12, {3 * 128}")
        a(f"s_add_u32 s9, s9, {SUM}")
        a(f"v_add_u32 {V(vSUMA)}, s9, {V(vSUMA)}")
        self.tile_setup(0)
        a("ds_write_b16 v18, v21")
        a("ds_write_b16 v24, v27")

    def tile_setup(self, st):
        a = self.a
        if st == 0:
            a("s_mov_b32 s12, 0")
            a(f"s_lshr_b32 s13, {S(sW)}, 2")
        else:
            a(f"s_lshr_b32 s12, {S(sW)}, 1")
            a(f"s_add_u32 s12, s12, {1 if st == 1 else 5}")
            a(f"s_and_b32 s13, {S(sW)}, 1")
        a("s_lshl_b32 s12, s12, 1")
        a(f"s_add_u32 s9, {S(sROW0)}, s12")
        a("s_cmp_ge_u32 s9, 384")
        a("s_cselect_b32 s10, 384, 0")
        a("s_cselect_b32 s15, 1, 0")
        a("s_sub_u32 s9, s9, s10")
        a(f"s_add_u32 s15, s15, {S(sSTRIP)}")
        a("s_lshl_b32 s15, s15, 1")
        a("s_add_u32 s15, s15, s13")
        a(f"s_mul_i32 {S(sTB[st])}, s9, 73728")
        a(f"s_mul_i32 s10, s15, {16 * 192}")
        a(f"s_add_u32 {S(sTB[st])}, {S(sTB[st])}, s10")
        a("s_cmp_eq_u32 s9, 0")
        a(f"s_cselect_b32 {S(sM1)}, 0xffff, 0")
        a("s_cmp_eq_u32 s9, 382")
        a(f"s_cselect_b32 {S(sM1 + 1)}, 0xffff0000, 0")
        a("s_cmp_eq_u32 s15, 0")
        a("s_cselect_b32 s10, 0x00010001, 0")
        a(f"s_or_b32 {S(sM0)}, {S(sM1)}, s10")
        a(f"s_or_b32 {S(sM0 + 1)}, {S(sM1 + 1)}, s10")
        a("s_cmp_eq_u32 s15, 23")
        a("s_cselect_b32 s10, 0x80008000, 0")
        a(f"s_or_b32 {S(sM2)}, {S(sM1)}, s10")
        a(f"s_or_b32 {S(sM2 + 1)}, {S(sM1 + 1)}, s10")
        a(f"s_mul_i32 s10, s13, {16 * 208}")
        a(f"s_add_u32 s10, s10, {RING}")
        a(f"v_lshrrev_b32 {V(vT0)}, 4, {V(vLANE)}")
        a(f"v_add_u32 {V(vT0)}, s12, {V(vT0)}")
        a(f"v_subrev_u32 {V(vT1)}, 10, {V(vT0)}")
        a(f"v_min_u32 {V(vT0)}, {V(vT0)}, {V(vT1)}")
        a(f"v_mul_u32_u24 {V(vT0)}, {ROWB}, {V(vT0)}")
        a(f"v_and_b32 {V(vT1)}, 15, {V(vLANE)}")
        a(f"v_mul_u32_u24 {V(vT1)}, 208, {V(vT1)}")
        a(f"v_add3_u32 {V(vT0)}, {V(vT0)}, {V(vT1)}, s10")
        a(f"v_mov_b32 {V(vT2)}, {ZERO}")
        a(f"v_add_u32 {V(vAB + 1)}, 208, {V(vT0)}")
        a(f"v_add_u32 {V(vAB + 2)}, 416, {V(vT0)}")
        a(f"v_cndmask_b32 {V(vAB)}, {V(vT0)}, {V(vT2)}, {S(sM0, 2)}")
        a(f"v_cndmask_b32 {V(vAB + 1)}, {V(vAB + 1)}, {V(vT2)}, {S(sM1, 2)}")
        a(f"v_cndmask_b32 {V(vAB + 2)}, {V(vAB + 2)}, {V(vT2)}, {S(sM2, 2)}")

    def conv_ln(self):
        a = self.a
        NB = 5
        steps = [(g, j) for g in range(12) for j in range(3)]

        def rd(n):
            g, j = steps[n]
            b = vCBUF + 8 * (n % NB)
            a(f"ds_read_b128 {V(b, 4)}, {V(vAA)} offset:{(3 * g + j) * 400}")
            a(f"ds_read_b128 {V(b + 4, 4)}, {V(vAB + j)} offset:{g * 16}")

        for n in range(NB):
            rd(n)
        for n, (g, j) in enumerate(steps):
            b = vCBUF + 8 * (n % NB)
            acc = V(vCACC + 4 * g, 4)
            a(f"v_mfma_f32_16x16x32_bf16 {acc}, {V(b, 4)}, {V(b + 4, 4)}, {acc if j else 0}")
            if n + NB < len(steps):
                rd(n + NB)
        s1a, s1b, s2a, s2b = 10, 12, 14, 16
        P = lambda i: V(vCACC + 2 * i, 2)
        a(f"v_pk_add_f32 {V(s1a, 2)}, {P(0)}, {P(1)}")
        a(f"v_pk_mul_f32 {V(s2a, 2)}, {P(0)}, {P(0)}")
        a(f"v_pk_add_f32 {V(s1b, 2)}, {P(2)}, {P(3)}")
        a(f"v_pk_mul_f32 {V(s2b, 2)}, {P(1)}, {P(1)}")
        a(f"v_pk_fma_f32 {V(s2a, 2)}, {P(2)}, {P(2)}, {V(s2a, 2)}")
        a(f"v_pk_fma_f32 {V(s2b, 2)}, {P(3)}, {P(3)}, {V(s2b, 2)}")
        for i in range(4, 24):
            x, y = (s1a, s2a) if i % 2 == 0 else (s1b, s2b)
            a(f"v_pk_add_f32 {V(x, 2)}, {V(x, 2)}, {P(i)}")
            a(f"v_pk_fma_f32 {V(y, 2)}, {P(i)}, {P(i)}, {V(y, 2)}")
        a(f"v_pk_add_f32 {V(s1a, 2)}, {V(s1a, 2)}, {V(s1b, 2)}")
        a(f"v_pk_add_f32 {V(s2a, 2)}, {V(s2a, 2)}, {V(s2b, 2)}")
        a(f"v_add_f32 v10, v10, v11")
        a(f"v_add_f32 v14, v14, v15")
        a(f"v_mov_b32 v11, v10")
        a(f"v_mov_b32 v15, v14")
        a("v_permlane32_swap_b32 v10, v11")
        a("v_permlane32_swap_b32 v14, v15")
        a("v_add_f32 v10, v10, v11")
        a("v_add_f32 v14, v14, v15")
        a(f"v_mul_f32 v10, {f2u(1.0 / 96):#x}, v10")
        a(f"v_mul_f32 v14, {f2u(1.0 / 96):#x}, v14")
        a("v_fma_f32 v14, -v10, v10, v14")
        a("v_max_f32 v14, 0, v14")
        a(f"v_add_f32 v14, {f2u(1e-5):#x}, v14")
        a("v_rsq_f32 v14, v14")
        a(f"v_mul_f32 v12, {f2u(-AS):#x}, v14")
        a("v_mul_f32 v13, -v10, v12")
        for i in range(24):
            a(f"v_pk_fma_f32 {P(i)}, {P(i)}, v[12:13], v[12:13] op_sel:[0,0,1] op_sel_hi:[1,0,1]")
            if i >= 1:
                k = i - 1
                a(f"v_cvt_pk_bf16_f32 {V(vY + k)}, {V(vCACC + 2 * k)}, {V(vCACC + 2 * k + 1)}")
        a(f"v_cvt_pk_bf16_f32 {V(vY + 23)}, {V(vCACC + 46)}, {V(vCACC + 47)}")

    def gemm1_gelu(self, tiles, after=None):
        a = self.a
        nt = len(tiles)
        seq = [(n, m) for n in range(nt) for m in range(6)]

        def rd(k):
            if k >= len(seq):
                return
            n, m = seq[k]
            b = vF + 4 * (k % 3)
            t = tiles[n]
            a(f"ds_read_b64_tr_b16 {V(b, 2)}, {V(t['base'])} offset:{t['off'] + m * 1024}")
            a(f"ds_read_b64_tr_b16 {V(b + 2, 2)}, {V(t['base'])} offset:{t['off'] + m * 1024 + 512}")

        def mm(k):
            if k >= len(seq):
                return
            n, m = seq[k]
            b = vF + 4 * (k % 3)
            d = V(vD[n % 2], 16)
            a(f"v_mfma_f32_32x32x16_bf16 {d}, {V(vY + 4 * m, 4)}, {V(b, 4)}, {d if m else 0}")
            rd(k + 3)

        def window(op, ks):
            if len(ks) > 0:
                mm(ks[0])
            for i in range(3):
                a(f"{op} {V(vG + i)}, {V(vG + i)}")
            if len(ks) > 1:
                mm(ks[1])
            for i in range(3, 8):
                a(f"{op} {V(vG + i)}, {V(vG + i)}")

        for k in range(3):
            rd(k)
        for k in range(6):
            mm(k)
        for n in range(nt):
            d = vD[n % 2]
            dst = tiles[n]["dst"]
            k0 = 6 * (n + 1)
            nxt = n + 1 < nt
            for hf in range(2):
                dd = d + 8 * hf
                for i in range(4):
                    a(f"v_pk_fma_f32 {V(vG + 2 * i, 2)}, {V(dd + 2 * i, 2)}, {V(dd + 2 * i, 2)}, {S(sCC, 2)}")
                for i in range(4):
                    a(f"v_pk_mul_f32 {V(vG + 2 * i, 2)}, {V(vG + 2 * i, 2)}, {V(dd + 2 * i, 2)}")
                window("v_exp_f32", ([k0, k0 + 1] if hf == 0 else [k0 + 4, k0 + 5]) if nxt else [])
                for i in range(4):
                    a(f"v_pk_add_f32 {V(vG + 2 * i, 2)}, {V(vG + 2 * i, 2)}, 1.0 op_sel_hi:[1,0]")
                window("v_rcp_f32", [k0 + 2, k0 + 3] if (hf == 0 and nxt) else [])
                for i in range(4):
                    a(f"v_pk_mul_f32 {V(vG + 2 * i, 2)}, {V(vG + 2 * i, 2)}, {V(dd + 2 * i, 2)}")
                for i in range(4):
                    a(f"v_cvt_pk_bf16_f32 {V(dst + 4 * hf + i)}, {V(vG + 2 * i)}, {V(vG + 2 * i + 1)}")
                for i in range(4):
                    p = V(dst + 4 * hf + i)
                    a(f"v_dot2_f32_bf16 {V(vSQ)}, {p}, {p}, {0 if (hf == 0 and i == 0) else V(vSQ)}")
            a(f"ds_add_f32 {V(vSUMA)}, {V(vSQ)} offset:{tiles[n]['soff']}")
            if after:
                after(n)

    def dump(self, regs, slot):
        a = self.a
        n = len(regs)
        a.wait(vm=0, lgkm=0)
        a.settle()
        a(f"s_lshl_b32 s9, {S(sB)}, 3")
        a(f"s_add_u32 s9, s9, {S(sW)}")
        a(f"s_mul_i32 s9, s9, {256 * 256}")
        a(f"s_add_u32 s9, s9, {(1 << 20) + slot * 256}")
        a(f"v_lshlrev_b32 {V(vSP + 3)}, 2, {V(vLANE)}")
        a(f"v_add_u32 {V(vSP + 3)}, s9, {V(vSP + 3)}")
        for i, r in enumerate(regs):
            a(f"global_store_dword {V(vSP + 3)}, {V(r)}, {S(sWS, 2)}")
            a(f"v_add_u32 {V(vSP + 3)}, 256, {V(vSP + 3)}")
        a.wait(vm=0)

    def build(self):
        a = self.a
        self.prologue()
        a.wait_vm_tag("r0")
        a(f"s_cmp_lg_u32 {S(sINIT)}, 0")
        a("s_cbranch_scc1 L_noflag")
        snap = a.snapshot()
        a(f"v_mov_b32 {V(vT2)}, 1")
        a("s_mov_b64 exec, 1")
        a(f"global_atomic_add v28, {V(vT2)}, {S(sDBG, 2)}")
        a("s_mov_b64 exec, -1")
        a.restore(snap)
        a.label("L_noflag")
        a.barrier()
        self.stamp()
        self.conv_ln()
        if self.debug == "y0":
            self.dump(list(range(vY, vY + 24)), 0)
        a.wait_vm_tag("w1")
        a.barrier()
        self.stamp()
        self.dma_rows(range(10, 12), "r1")
        self.gemm1_gelu([dict(base=vWHI, off=gi * 6144, soff=gi * 128, dst=vHSH + 8 * gi) for gi in range(3)])
        if self.debug == "h0":
            self.dump(list(range(vHSH, vHSH + 24)), 0)
        a(f"v_add_u32 {V(vWHI)}, {6 * 6144}, {V(vWLO)}")
        a(f"v_and_b32 {V(vSUMA)}, 31, {V(vLANE)}")
        a(f"v_lshlrev_b32 {V(vSUMA)}, 2, {V(vSUMA)}")
        a(f"v_add_u32 {V(vSUMA)}, {SUM}, {V(vSUMA)}")

        def own(dstf):
            return [dict(base=vWLO if g < 6 else vWHI, off=(g % 6) * 6144, soff=g * 128, dst=dstf(g))
                    for g in range(12)]

        self.tile_setup(1)
        self.stamp()
        a.wait_vm_tag("r1")
        a.barrier()
        self.stamp()
        self.conv_ln()
        if self.debug == "y1":
            self.dump(list(range(vY, vY + 24)), 0)
        a.barrier()
        self.stamp()
        self.dma_rows(range(12, 20), "r2")
        a(f"v_mov_b32 {V(vT0)}, 0")
        a(f"global_load_dword {V(vSP)}, {V(vT0)}, {S(sDBG, 2)} sc1", tag="r2")
        self.gemm1_gelu(own(lambda g: vH1 + 8 * g))
        if self.debug == "h1":
            self.dump(list(range(vH1, vH1 + 96)), 0)
        self.tile_setup(2)
        self.stamp()
        a.wait_vm_tag("r2")
        a.barrier()
        self.conv_ln()
        if self.debug == "y2":
            self.dump(list(range(vY, vY + 24)), 0)
        vHW0, vHW1 = vAB, vAB + 1
        a(f"v_lshrrev_b32 {V(vT1)}, 5, {V(vLANE)}")
        a(f"v_lshlrev_b32 {V(vT1)}, 1, {V(vT1)}")
        a(f"v_bfe_u32 {V(vT2)}, {V(vLANE)}, 1, 2")
        a(f"v_xor_b32 {V(vT1)}, {V(vT1)}, {V(vT2)}")
        a(f"v_and_b32 {V(vT2)}, 31, {V(vLANE)}")
        a(f"v_lshlrev_b32 {V(vT2)}, 6, {V(vT2)}")
        a(f"v_lshl_add_u32 {V(vT1)}, {V(vT1)}, 4, {V(vT2)}")
        a(f"s_mul_i32 s9, {S(sW)}, {3 * 2048}")
        a(f"s_add_u32 s9, s9, {HSH}")
        a(f"v_add_u32 {V(vT2)}, s9, {V(vT1)}")
        a(f"v_xor_b32 {V(vT3)}, 16, {V(vT2)}")
        a(f"s_lshl_b32 s9, {S(sW)}, 12")
        a(f"s_add_u32 s9, s9, {HOV}")
        a(f"v_add_u32 {V(vHW0)}, s9, {V(vT1)}")
        a(f"v_xor_b32 {V(vHW1)}, 16, {V(vHW0)}")
        a.barrier()
        self.stamp()
        for gi in range(3):
            a(f"ds_write_b128 {V(vT2)}, {V(vHSH + 8 * gi, 4)} offset:{gi * 2048}")
            a(f"ds_write_b128 {V(vT3)}, {V(vHSH + 8 * gi + 4, 4)} offset:{gi * 2048}")

        def dst2(g):
            return vD[g % 2] if g in (0, 1) else h2reg(g)

        def after2(n):
            if n in (0, 1):
                a(f"ds_write_b128 {V(vHW0)}, {V(vD[n], 4)} offset:{n * 2048}")
                a(f"ds_write_b128 {V(vHW1)}, {V(vD[n] + 4, 4)} offset:{n * 2048}")

        self.gemm1_gelu(own(dst2), after=after2)
        self.stamp()
        a.barrier()
        self.publish_and_shadow(vHW0, vHW1)
        self.phase2(vHW0, vHW1)
        if self.stamps:
            self.stamp()
            self.write_stamps()
        a.label("L_end")
        a("s_endpgm")

    def spin(self, label, ptr, off, expect, first_reg=None):
        a = self.a
        a(f"v_mov_b32 {V(vT0)}, 0")
        a("s_mov_b32 s10, 0")
        if first_reg is not None:
            a(f"v_readfirstlane_b32 s9, {V(first_reg)}")
            a(f"s_cmp_eq_u32 s9, {expect}")
            a(f"s_cbranch_scc1 {label}_done")
        a.settle()
        a.label(f"{label}_loop")
        a(f"global_load_dword {V(vT1)}, {V(vT0)}, {S(ptr, 2)} offset:{off} sc1")
        a.wait(vm=0)
        a(f"v_readfirstlane_b32 s9, {V(vT1)}")
        a(f"s_cmp_eq_u32 s9, {expect}")
        a(f"s_cbranch_scc1 {label}_done")
        a("s_sleep 1")
        a("s_add_u32 s10, s10, 1")
        a("s_cmp_lt_u32 s10, 0x40000")
        a(f"s_cbranch_scc1 {label}_loop")
        a.label(f"{label}_done")
        a.settle()

    def publish_and_shadow(self, vHW0, vHW1):
        a = self.a
        a(f"s_cmp_lg_u32 {S(sW)}, 7")
        a("s_cbranch_scc1 L_nopub")
        snap = a.snapshot()
        a(f"v_lshlrev_b32 {V(vT2)}, 2, {V(vLANE)}")
        a(f"v_add_u32 {V(vT3)}, {SUM}, {V(vT2)}")
        for i in range(6):
            a(f"ds_read_b32 {V(vG + i)}, {V(vT3)} offset:{i * 256}")
        self.spin("L_init", sDBG, 0, 8, first_reg=vSP)
        for i in range(6):
            a(f"global_atomic_add_f32 {V(vT2)}, {V(vG + i)}, {S(sREP, 2)} offset:{i * 256}")
        a.wait(vm=0)
        a(f"v_mov_b32 {V(vT1)}, 1")
        a("s_mov_b64 exec, 1")
        a(f"global_atomic_add {V(vT0)}, {V(vT1)}, {S(sREP, 2)} offset:2048")
        a("s_mov_b64 exec, -1")
        a.restore(snap)
        a.settle()
        a.label("L_nopub")
        a(f"v_lshrrev_b32 {V(vT1)}, 2, {V(vLANE)}")
        a(f"v_mul_u32_u24 {V(vT1)}, 192, {V(vT1)}")
        a(f"v_and_b32 {V(vT2)}, 3, {V(vLANE)}")
        a(f"v_lshl_add_u32 {V(vT1)}, {V(vT2)}, 4, {V(vT1)}")
        a(f"s_mul_i32 s14, {S(sW)}, 9216")
        a(f"v_add_u32 {V(vT1)}, s14, {V(vT1)}")
        for kk in range(3):
            for G in range(3):
                a(f"s_add_u32 m0, s14, {W_OFF + (kk * 3 + G) * 1024}")
                a(f"s_mov_b32 s9, {kk * 16 * 192 + G * 64}")
                a(f"buffer_load_dwordx4 {V(vT1)}, {S(srdW2, 4)}, s9 offen lds", tag="w2")
        a(f"v_lshlrev_b32 {V(vT1)}, 2, {V(vLANE)}")
        for i in range(3):
            a(f"global_load_dword {V(vSP + i)}, {V(vT1)}, {S(sG, 2)} offset:{i * 256}")
        vI = 84
        vDT = (16, 68)
        a(f"v_and_b32 {V(vT1)}, 31, {V(vLANE)}")
        a(f"v_lshrrev_b32 {V(vT2)}, 5, {V(vLANE)}")
        a(f"v_lshlrev_b32 {V(vT2)}, 4, {V(vT2)}")
        a(f"v_sub_u32 {V(vT1)}, {V(vT1)}, {V(vT2)}")
        a(f"v_and_b32 {V(vT2)}, 1, {V(vT1)}")
        a(f"v_lshlrev_b32 {V(vT2)}, 4, {V(vT2)}")
        a(f"v_mov_b32 {V(vT3)}, 0x3f80")
        a(f"v_lshlrev_b32 {V(vT2)}, {V(vT2)}, {V(vT3)}")
        a(f"v_lshrrev_b32 {V(vT1)}, 1, {V(vT1)}")
        a(f"v_mov_b32 {V(vT3)}, 0")
        for n in range(8):
            a(f"v_cmp_eq_u32 vcc, {n}, {V(vT1)}")
            a(f"v_cndmask_b32 {V(vI + n)}, {V(vT3)}, {V(vT2)}, vcc")
        tl = [vH1 + 8 * g for g in range(12)] + [h2reg(g) for g in range(2, 12)]

        def tm(n):
            d = V(vDT[n % 2], 16)
            a(f"v_mfma_f32_32x32x16_bf16 {d}, {V(tl[n], 4)}, {V(vI, 4)}, 0")
            a(f"v_mfma_f32_32x32x16_bf16 {d}, {V(tl[n] + 4, 4)}, {V(vI + 4, 4)}, {d}")

        tm(0)
        for n in range(len(tl)):
            if n + 1 < len(tl):
                tm(n + 1)
            d = vDT[n % 2]
            for i in range(8):
                a(f"v_cvt_pk_bf16_f32 {V(tl[n] + i)}, {V(d + 2 * i)}, {V(d + 2 * i + 1)}")
        vHR = vAB + 2
        a(f"v_lshrrev_b32 {V(vT1)}, 5, {V(vLANE)}")
        a(f"v_bfe_u32 {V(vT2)}, {V(vLANE)}, 2, 2")
        a(f"v_lshl_add_u32 {V(vT1)}, {V(vT1)}, 2, {V(vT2)}")
        a(f"v_bfe_u32 {V(vT2)}, {V(vT1)}, 1, 2")
        a(f"v_bfe_u32 {V(vT3)}, {V(vLANE)}, 4, 1")
        a(f"v_bfe_u32 {V(vT4)}, {V(vLANE)}, 1, 1")
        a(f"v_lshl_add_u32 {V(vT3)}, {V(vT3)}, 1, {V(vT4)}")
        a(f"v_xor_b32 {V(vT2)}, {V(vT2)}, {V(vT3)}")
        a(f"v_lshlrev_b32 {V(vT1)}, 6, {V(vT1)}")
        a(f"v_lshl_add_u32 {V(vT1)}, {V(vT2)}, 4, {V(vT1)}")
        a(f"v_and_b32 {V(vT2)}, 1, {V(vLANE)}")
        a(f"v_lshl_add_u32 {V(vHR)}, {V(vT2)}, 3, {V(vT1)}")
        a(f"s_lshl_b32 s9, {S(sW)}, 12")
        a(f"s_add_u32 s9, s9, {HOV}")
        a(f"v_add_u32 {V(vT1)}, s9, {V(vHR)}")
        for g in range(2):
            for i in range(4):
                a(f"ds_read_b64_tr_b16 {V(h2reg(g) + 2 * i, 2)}, {V(vT1)} offset:{g * 2048 + i * 512}")
        fr = [16 + 4 * n for n in range(5)] + [68 + 4 * n for n in range(4)]
        self.fr = fr
        a(f"v_add_u32 {V(vWHI)}, s14, {V(vWLO)}")
        a(f"v_lshrrev_b32 {V(vT2)}, 5, {V(vLANE)}")
        a(f"v_lshlrev_b32 {V(vT2)}, 3, {V(vT2)}")
        a(f"s_mul_i32 s9, {S(sW)}, 96")
        a(f"v_add_u32 {V(vT2)}, s9, {V(vT2)}")
        vBF = (84, 88, 12)
        a(f"v_mov_b32 {V(vT0)}, {V(vT2)}")
        for kk in range(3):
            for e in range(2):
                a(f"global_load_dwordx2 {V(vBF[kk] + 2 * e, 2)}, {V(vT0)}, {S(sBB, 2)} offset:{kk * 32 + e * 16}")
        a.wait_vm_tag("w2")
        for n in range(9):
            for e in range(2):
                a(f"ds_read_b64_tr_b16 {V(fr[n] + 2 * e, 2)}, {V(vWHI)} offset:{n * 1024 + e * 512}")
        vBA = (vSUMA, vDMA, vSQ)
        for kk in range(3):
            for i in range(4):
                for G in range(3):
                    c = 0 if (kk == 0 and i == 0) else V(vBA[G])
                    a(f"v_dot2_f32_bf16 {V(vBA[G])}, {V(fr[kk * 3 + G] + i)}, {V(vBF[kk] + i)}, {c}")
        a(f"v_and_b32 {V(vT0)}, 31, {V(vLANE)}")
        a(f"v_lshlrev_b32 {V(vT0)}, 2, {V(vT0)}")
        a(f"v_add_u32 {V(vT0)}, {BIAS}, {V(vT0)}")
        for G in range(3):
            a(f"ds_add_f32 {V(vT0)}, {V(vBA[G])} offset:{G * 128}")
        self.stamp()
        a.wait(vm=0, lgkm=0)
        self.spin("L_poll", sREPW, 2048, 32)
        self.stamp()
        a(f"v_lshlrev_b32 {V(vT0)}, 3, {V(vLANE)}")
        for i in range(3):
            a(f"global_load_dwordx2 {V(84 + 2 * i, 2)}, {V(vT0)}, {S(sREPW, 2)} offset:{i * 512} sc1")
        a(f"v_add_u32 {V(vT0)}, {TOT}, {V(vT0)}")
        for i in range(6):
            a(f"ds_add_f32 {V(vT0)}, {V(84 + i)} offset:{(i // 2) * 512 + (i % 2) * 4}")
        a.barrier()
        for i in range(3):
            a(f"ds_read_b64 {V(84 + 2 * i, 2)}, {V(vT0)} offset:{i * 512}")
        a(f"s_mov_b32 s9, {f2u(1.0 / (AS * AS)):#x}")
        a(f"v_mov_b32 {V(vT1)}, {f2u(1e-6):#x}")
        for i in range(6):
            a(f"v_fma_f32 {V(84 + i)}, {V(84 + i)}, s9, {V(vT1)}")
        for i in range(6):
            a(f"v_sqrt_f32 {V(84 + i)}, {V(84 + i)}")
        a(f"v_add_f32 {V(vT2)}, v84, v85")
        a(f"v_add_f32 {V(vT3)}, v86, v87")
        a(f"v_add_f32 {V(vT4)}, v88, v89")
        a(f"v_add_f32 {V(vT2)}, {V(vT2)}, {V(vT3)}")
        a(f"v_add_f32 {V(vT2)}, {V(vT2)}, {V(vT4)}")
        for mode in ("quad_perm:[1,0,3,2]", "quad_perm:[2,3,0,1]", "row_half_mirror", "row_mirror"):
            a(f"v_add_f32_dpp {V(vT2)}, {V(vT2)}, {V(vT2)} {mode} row_mask:0xf bank_mask:0xf")
        a(f"v_readlane_b32 s9, {V(vT2)}, 0")
        a(f"v_readlane_b32 s10, {V(vT2)}, 16")
        a(f"v_readlane_b32 s12, {V(vT2)}, 32")
        a(f"v_readlane_b32 s13, {V(vT2)}, 48")
        a(f"v_mov_b32 {V(vT2)}, s9")
        a(f"v_add_f32 {V(vT2)}, s10, {V(vT2)}")
        a(f"v_add_f32 {V(vT2)}, s12, {V(vT2)}")
        a(f"v_add_f32 {V(vT2)}, s13, {V(vT2)}")
        a(f"s_mov_b32 s9, {f2u(1.0 / 384):#x}")
        a(f"v_fma_f32 {V(vT2)}, {V(vT2)}, s9, {V(vT1)}")
        a(f"v_rcp_f32 {V(vT2)}, {V(vT2)}")
        a(f"v_mul_f32 {V(vT2)}, {f2u(-1.0 / AS):#x}, {V(vT2)}")
        a(f"v_mov_b32 {V(vT1)}, {f2u(-1.0 / AS):#x}")
        for i in range(3):
            a(f"v_lshlrev_b32 {V(vT3)}, 16, {V(vSP + i)}")
            a(f"v_and_b32 {V(vT4)}, 0xffff0000, {V(vSP + i)}")
            a(f"v_mul_f32 {V(84 + 2 * i)}, {V(84 + 2 * i)}, {V(vT2)}")
            a(f"v_mul_f32 {V(85 + 2 * i)}, {V(85 + 2 * i)}, {V(vT2)}")
            a(f"v_fma_f32 {V(84 + 2 * i)}, {V(84 + 2 * i)}, {V(vT3)}, {V(vT1)}")
            a(f"v_fma_f32 {V(85 + 2 * i)}, {V(85 + 2 * i)}, {V(vT4)}, {V(vT1)}")
        a(f"v_subrev_u32 {V(vT3)}, {TOT - SUM}, {V(vT0)}")
        for i in range(3):
            a(f"ds_write_b64 {V(vT3)}, {V(84 + 2 * i, 2)} offset:{i * 512}")
        a(f"v_lshrrev_b32 {V(vT0)}, 5, {V(vLANE)}")
        a(f"v_lshlrev_b32 {V(vT0)}, 4, {V(vT0)}")
        a(f"s_mul_i32 s9, {S(sW)}, 192")
        a(f"s_add_u32 s9, s9, {SUM}")
        a(f"v_add_u32 {V(vT0)}, s9, {V(vT0)}")
        a(f"v_and_b32 {V(vWHI)}, 35, {V(vLANE)}")
        a(f"v_bfe_u32 {V(vT1)}, {V(vLANE)}, 4, 1")
        a(f"v_lshl_add_u32 {V(vWHI)}, {V(vT1)}, 2, {V(vWHI)}")
        a(f"v_bfe_u32 {V(vT1)}, {V(vLANE)}, 2, 2")
        a(f"v_lshl_add_u32 {V(vWHI)}, {V(vT1)}, 3, {V(vWHI)}")
        a(f"v_lshlrev_b32 {V(vWHI)}, 4, {V(vWHI)}")
        a(f"v_add_u32 {V(vWHI)}, s14, {V(vWHI)}")
        for kk in range(3):
            a(f"ds_read_b128 {V(84, 4)}, {V(vT0)} offset:{kk * 64}")
            a(f"ds_read_b128 {V(88, 4)}, {V(vT0)} offset:{kk * 64 + 32}")
            for G in range(3):
                f = fr[kk * 3 + G]
                for i in range(4):
                    t = vT1 if i % 2 == 0 else vT3
                    a(f"v_lshlrev_b32 {V(t)}, 16, {V(f + i)}")
                    a(f"v_and_b32 {V(t + 1)}, 0xffff0000, {V(f + i)}")
                    a(f"v_pk_mul_f32 {V(t, 2)}, {V(t, 2)}, {V(84 + 2 * i, 2)}")
                    a(f"v_cvt_pk_bf16_f32 {V(f + i)}, {V(t)}, {V(t + 1)}")
                a(f"ds_write_b128 {V(vWHI)}, {V(f, 4)} offset:{(kk * 3 + G) * 1024}")
        self.vHR = vHR

    def phase2(self, vHW0, vHW1):
        a = self.a
        vACC, vA, vX = 68, 16, 28
        vALO, vAHI = vWLO, vWHI
        vXA, vSA, vBI, vRD = vAA, vSUMA, vDMA, vSQ
        a(f"v_lshlrev_b32 {V(vALO)}, 4, {V(vLANE)}")
        a(f"v_bfe_u32 {V(vT1)}, {V(vLANE)}, 3, 1")
        a(f"v_mul_u32_u24 {V(vXA)}, 73728, {V(vT1)}")
        a(f"v_and_b32 {V(vT1)}, 3, {V(vLANE)}")
        a(f"v_bfe_u32 {V(vT2)}, {V(vLANE)}, 2, 1")
        a(f"v_lshl_add_u32 {V(vT1)}, {V(vT2)}, 3, {V(vT1)}")
        a(f"v_bfe_u32 {V(vT2)}, {V(vLANE)}, 4, 1")
        a(f"v_lshl_add_u32 {V(vT1)}, {V(vT2)}, 2, {V(vT1)}")
        a(f"v_mul_u32_u24 {V(vT1)}, 192, {V(vT1)}")
        a(f"v_add_u32 {V(vXA)}, {V(vXA)}, {V(vT1)}")
        a(f"v_lshrrev_b32 {V(vT1)}, 5, {V(vLANE)}")
        a(f"v_lshl_add_u32 {V(vXA)}, {V(vT1)}, 5, {V(vXA)}")
        a(f"v_lshlrev_b32 {V(vBI)}, 6, {V(vT1)}")
        a(f"v_add_u32 {V(vBI)}, {BIAS}, {V(vBI)}")
        a(f"v_mul_u32_u24 {V(vSA)}, 73728, {V(vT1)}")
        a(f"v_bfe_u32 {V(vT1)}, {V(vLANE)}, 2, 2")
        a(f"v_bfe_u32 {V(vT2)}, {V(vLANE)}, 4, 1")
        a(f"v_lshl_add_u32 {V(vT1)}, {V(vT2)}, 3, {V(vT1)}")
        a(f"v_mul_u32_u24 {V(vT1)}, 192, {V(vT1)}")
        a(f"v_add_u32 {V(vSA)}, {V(vSA)}, {V(vT1)}")
        a(f"v_and_b32 {V(vT1)}, 3, {V(vLANE)}")
        a(f"v_lshl_add_u32 {V(vSA)}, {V(vT1)}, 4, {V(vSA)}")
        a(f"v_bfe_u32 {V(vT2)}, {V(vLANE)}, 3, 2")
        a(f"v_xor_b32 {V(vT1)}, {V(vT1)}, {V(vT2)}")
        a(f"v_lshrrev_b32 {V(vT2)}, 2, {V(vLANE)}")
        a(f"v_lshlrev_b32 {V(vT2)}, 6, {V(vT2)}")
        a(f"v_lshl_add_u32 {V(vRD)}, {V(vT1)}, 4, {V(vT2)}")
        a(f"s_lshl_b32 s9, {S(sW)}, 12")
        a(f"s_add_u32 s9, s9, {HOV}")
        a(f"v_add_u32 {V(vRD)}, s9, {V(vRD)}")
        a.barrier()
        a(f"v_add_u32 {V(vAHI)}, {36 * 1024}, {V(vALO)}")
        self.stamp()
        cnt = [0]

        def unit(tb, G, bfrag, brd=None, goff=True):
            Gx = G if goff else 0
            par = cnt[0] % 2
            cnt[0] += 1
            for e in range(2):
                a(f"buffer_load_dwordx4 {V(vX + 4 * e, 4)}, {V(vXA)}, {S(srdX, 4)}, {S(tb)} offen offset:{Gx * 64 + e * 16}")
            for i in range(4):
                a(f"ds_read_b128 {V(vACC + 4 * i, 4)}, {V(vBI)} offset:{Gx * 128 + i * 16}")

            def rd(ks):
                if ks >= 24:
                    return
                o = (ks * 3 + Gx) * 1024
                base, o = (vALO, o) if ks < 12 else (vAHI, o - 36 * 1024)
                a(f"ds_read_b128 {V(vA + 4 * (ks % 3), 4)}, {V(base)} offset:{o}")
                if brd:
                    brd(ks)

            for ks in range(3):
                rd(ks)
            acc = V(vACC, 16)
            for ks in range(24):
                a(f"v_mfma_f32_32x32x16_bf16 {acc}, {V(vA + 4 * (ks % 3), 4)}, {V(bfrag(ks), 4)}, {acc}")
                rd(ks + 3)
            for i in range(8):
                t = vT1 if i % 2 == 0 else vT3
                a(f"v_lshlrev_b32 {V(t)}, 16, {V(vX + i)}")
                a(f"v_and_b32 {V(t + 1)}, 0xffff0000, {V(vX + i)}")
                a(f"v_add_f32 {V(t)}, {V(t)}, {V(vACC + 2 * i)}")
                a(f"v_add_f32 {V(t + 1)}, {V(t + 1)}, {V(vACC + 2 * i + 1)}")
                a(f"v_cvt_pk_bf16_f32 {V(84 + i)}, {V(t)}, {V(t + 1)}")
            a(f"ds_write_b128 {V(vHW0)}, {V(84, 4)} offset:{par * 2048}")
            a(f"ds_write_b128 {V(vHW1)}, {V(88, 4)} offset:{par * 2048}")
            for i in range(2):
                a(f"ds_read_b128 {V(84 + 4 * i, 4)}, {V(vRD)} offset:{par * 2048 + i * 1024}")
            for i in range(2):
                a(f"buffer_store_dwordx4 {V(84 + 4 * i, 4)}, {V(vSA)}, {S(srdO, 4)}, {S(tb)} offen offset:{i * 768 + Gx * 64} nt")

        for G in range(3):
            unit(sTB[1], G, lambda ks: vH1 + 8 * (ks // 2) + 4 * (ks % 2))
        for G in range(3):
            unit(sTB[2], G, lambda ks: h2reg(ks // 2) + 4 * (ks % 2))
        a(f"s_cmp_ge_u32 {S(sW)}, 6")
        a("s_cbranch_scc1 L_fin")
        a(f"s_cmp_ge_u32 {S(sW)}, 3")
        a("s_cselect_b32 s12, 1, 0")
        a("s_mul_i32 s13, s12, 3")
        a(f"s_sub_u32 s13, {S(sW)}, s13")
        a(f"s_mul_i32 s9, {S(sROW0)}, 73728")
        a(f"s_mul_i32 s10, {S(sSTRIP)}, 6144")
        a("s_add_u32 s9, s9, s10")
        a("s_mul_i32 s10, s12, 3072")
        a("s_add_u32 s9, s9, s10")
        a("s_lshl_b32 s10, s13, 6")
        a(f"s_add_u32 {S(sTB[0])}, s9, s10")
        a("s_lshl_b32 s9, s13, 10")
        a(f"v_add_u32 {V(vALO)}, s9, {V(vALO)}")
        a(f"v_add_u32 {V(vAHI)}, s9, {V(vAHI)}")
        a("s_lshl_b32 s9, s13, 7")
        a(f"v_add_u32 {V(vBI)}, s9, {V(vBI)}")
        a(f"s_mul_i32 s9, s12, {12 * 2048}")
        a(f"s_add_u32 s9, s9, {HSH}")
        a(f"v_add_u32 {V(self.vHR)}, s9, {V(self.vHR)}")
        vBB = vH1

        def brd(ks):
            for e in range(2):
                a(f"ds_read_b64_tr_b16 {V(vBB + 4 * (ks % 3) + 2 * e, 2)}, {V(self.vHR)} offset:{ks * 1024 + e * 512}")

        unit(sTB[0], 0, lambda ks: vBB + 4 * (ks % 3), brd=brd, goff=False)
        a.settle()
        a.label("L_fin")

    def write_stamps(self):
        a = self.a
        a.wait(vm=0, lgkm=0)
        a(f"s_memtime {S(sTS + 2 * self.nts, 2)}")
        self.nts += 1
        a.wait(lgkm=0)
        a(f"s_lshl_b32 s9, {S(sB)}, 3")
        a(f"s_add_u32 s9, s9, {S(sW)}")
        a("s_lshl_b32 s9, s9, 6")
        a(f"s_add_u32 s9, s9, {1 << 19}")
        a(f"v_mov_b32 {V(vT0)}, s9")
        a("s_mov_b64 exec, 1")
        for i in range(self.nts):
            if i:
                a(f"s_sub_u32 s10, {S(sTS + 2 * i)}, {S(sTS)}")
                a(f"v_mov_b32 {V(vT1)}, s10")
            else:
                a(f"v_mov_b32 {V(vT1)}, {S(sTS)}")
            a(f"global_store_dword {V(vT0)}, {V(vT1)}, {S(sWS, 2)} offset:{i * 4}")
        a.wait(vm=0)


HEADER = """; Kernarg layout for this problem (72 bytes, ptrs only, base s[0:1]):
; @launch grid=(256,1,1) block=(512,1,1) lds={lds}
.amdgcn_target "amdgcn-amd-amdhsa--gfx950"
.text
.globl {name}_kernel
.p2align 8
.type {name}_kernel,@function
{name}_kernel:
"""

FOOTER = """.section .rodata,"a"
.p2align 6
.amdhsa_kernel {name}_kernel
  .amdhsa_next_free_vgpr 256
  .amdhsa_next_free_sgpr 102
  .amdhsa_accum_offset 256
  .amdhsa_group_segment_fixed_size 0
  .amdhsa_kernarg_size 72
  .amdhsa_user_sgpr_count 2
  .amdhsa_user_sgpr_kernarg_segment_ptr 1
  .amdhsa_system_sgpr_workgroup_id_x 1
.end_amdhsa_kernel
"""


def generate(path, **kw):
    g = Gen(**kw)
    g.build()
    txt = HEADER.format(name=NAME, lds=LDS_BYTES) + g.a.text() + FOOTER.format(name=NAME)
    open(path, "w").write(txt)
    print(path, "instr counts:", g.a.count, "nop states:", g.a.nops, "max vgpr:", g.a.maxv, file=sys.stderr)


if __name__ == "__main__":
    import argparse
    ap = argparse.ArgumentParser()
    ap.add_argument("-o", default=f"cdna_kernels/{NAME}.s")
    ap.add_argument("--debug", default=None)
    ap.add_argument("--stamps", action="store_true")
    args = ap.parse_args()
    generate(args.o, debug=args.debug, stamps=args.stamps)
```

```python
import math
import struct
import sys

from asmlib import Asm, S, V

NAME = "standalone__modern_conv_block_slak__vision"
XB = 28311552

W_OFF = 0
RING = 73728
ROWB = 7168
DWT = RING + 10 * ROWB
ZERO = DWT + 36 * 400
SUM = ZERO + 256
BIAS = SUM + 3072
LDS_END = BIAS + 384
HSH = RING
HOV = HSH + 24 * 2048
TOT = HOV + 8 * 4096
BIAS64 = TOT + 3072
assert BIAS64 + 768 <= ZERO
LDS_BYTES = 163840


def f2u(x):
    return struct.unpack("<I", struct.pack("<f", x))[0]


C1 = 2.0 * math.sqrt(2.0 / math.pi) * math.log2(math.e)
C2 = C1 * 0.044715
AS = C2 ** (1.0 / 3.0)
CC = C1 / AS

vLANE = 1
vAA = 2
vAB = 3
vWLO, vWHI = 6, 7
vSUMA = 8
vDMA = 9
vT0 = 10
vSQ = 11
vT1, vT2, vT3, vT4 = 12, 13, 14, 15
vG = 16
vF = 24
vD = (36, 52)
vY = 68
vH1 = 92
vH2 = 188
vCACC = 20
vCBUF = 188
vHSH = 228
vSP = 252

sW = 3
sB = 4
sSTRIP, sROW0, sBASE0, sCROSS = 5, 6, 7, 8
sRINGW = 11
sX, sDW, sW1, sW2, sG, sBB, sOUT, sDBG, sWS = 16, 18, 20, 22, 24, 26, 28, 30, 32
sCC = 34
srdX, srdW1, srdW2, srdO = 36, 40, 44, 48
sTB = (54, 52, 53)
sM0, sM1, sM2 = 56, 58, 60
sREP = 64
sREPW = 66
sINIT = 68
sTS = 70


def h2reg(g):
    if g == 0:
        return vD[0] + 8
    if g == 1:
        return vD[1] + 8
    if g == 10:
        return vD[0]
    if g == 11:
        return vD[1]
    return vH2 + 8 * (g - 2)


class Gen:
    def __init__(self, debug=None, stamps=False, opts=None):
        self.a = Asm()
        self.debug = debug
        self.stamps = stamps
        self.nts = 0
        self.opts = opts or {}
        self.clk = 's_memrealtime' if self.opts.get('rt') else 's_memtime'

    def stamp(self):
        if self.stamps:
            assert self.nts < 15
            self.a.wait(lgkm=0)
            self.a(f"{self.clk} {S(sTS + 2 * self.nts, 2)}")
            self.a.wait(lgkm=0)
            self.nts += 1

    def dma_rows(self, rows, tag):
        a = self.a
        a("s_mov_b32 exec_hi, 0x00ffffff")
        for rho in rows:
            a(f"s_add_u32 s9, {S(sBASE0)}, {rho * 73728}")
            a(f"s_sub_u32 s10, s9, {384 * 73728 - 6144}")
            a(f"s_cmp_le_u32 {S(sCROSS)}, {rho}")
            a("s_cselect_b32 s9, s10, s9")
            a(f"s_add_u32 m0, {S(sRINGW)}, {(rho % 10) * ROWB}")
            a(f"v_add_u32 {V(vT0)}, s9, {V(vDMA)}")
            a(f"buffer_load_dwordx4 {V(vT0)}, {S(srdX, 4)}, 0 offen nt lds", tag=tag)
        a("s_mov_b32 exec_hi, -1")

    def prologue(self):
        a = self.a
        a("s_cmp_ge_u32 s2, 256")
        a("s_cbranch_scc1 L_end")
        a(f"s_load_dwordx16 {S(16, 16)}, s[0:1], 0")
        a(f"s_load_dwordx2 {S(sWS, 2)}, s[0:1], 64")
        if self.stamps:
            a(f"{self.clk} {S(sTS, 2)}")
            self.nts = 1
        a(f"v_and_b32 {V(vLANE)}, 63, v0")
        a(f"v_lshrrev_b32 {V(vT0)}, 6, v0")
        a(f"v_readfirstlane_b32 {S(sW)}, {V(vT0)}")
        a("s_and_b32 s9, s2, 7")
        a("s_lshl_b32 s9, s9, 5")
        a("s_lshr_b32 s10, s2, 3")
        a(f"s_add_u32 {S(sB)}, s9, s10")
        a(f"s_mul_i32 s9, {S(sB)}, 3")
        a(f"s_lshr_b32 {S(sSTRIP)}, s9, 6")
        a(f"s_mul_i32 s9, {S(sB)}, 18")
        a(f"s_mul_i32 s10, {S(sSTRIP)}, 384")
        a(f"s_sub_u32 {S(sROW0)}, s9, s10")
        a(f"s_mul_i32 s9, {S(sROW0)}, 73728")
        a(f"s_mul_i32 s10, {S(sSTRIP)}, 6144")
        a("s_add_u32 s9, s9, s10")
        a(f"s_sub_u32 {S(sBASE0)}, s9, {73728 + 192}")
        a(f"s_sub_u32 {S(sCROSS)}, 385, {S(sROW0)}")
        a(f"s_mul_i32 s9, {S(sW)}, 896")
        a(f"s_add_u32 {S(sRINGW)}, s9, {RING}")
        a(f"s_mul_i32 s9, {S(sW)}, 56")
        a(f"v_add_u32 {V(vT0)}, s9, {V(vLANE)}")
        a(f"v_mul_u32_u24 {V(vT1)}, 5042, {V(vT0)}")
        a(f"v_lshrrev_b32 {V(vT1)}, 16, {V(vT1)}")
        a(f"v_mul_u32_u24 {V(vT2)}, 13, {V(vT1)}")
        a(f"v_sub_u32 {V(vT2)}, {V(vT0)}, {V(vT2)}")
        a(f"v_mul_u32_u24 {V(vDMA)}, 192, {V(vT1)}")
        a(f"v_lshl_add_u32 {V(vDMA)}, {V(vT2)}, 4, {V(vDMA)}")
        a(f"v_cmp_lt_u32 vcc, 33, {V(vT1)}")
        a(f"v_cmp_eq_u32 {S(sM0, 2)}, 12, {V(vT2)}")
        a(f"s_or_b64 vcc, vcc, {S(sM0, 2)}")
        a(f"v_mov_b32 {V(vT3)}, 0x40000000")
        a(f"v_cndmask_b32 {V(vDMA)}, {V(vDMA)}, {V(vT3)}, vcc")
        for rnd in range(2):
            e, tap, c, ad, t = 16 + 6 * rnd, 17 + 6 * rnd, 18 + 6 * rnd, 19 + 6 * rnd, 20 + 6 * rnd
            if rnd == 0:
                a(f"v_mov_b32 {V(e)}, v0")
            else:
                a(f"v_add_u32 {V(e)}, 512, v0")
                a(f"v_min_u32 {V(e)}, 863, {V(e)}")
            a(f"v_mul_u32_u24 {V(tap)}, 683, {V(e)}")
            a(f"v_lshrrev_b32 {V(tap)}, 16, {V(tap)}")
            a(f"v_mul_u32_u24 {V(c)}, 96, {V(tap)}")
            a(f"v_sub_u32 {V(c)}, {V(e)}, {V(c)}")
            a(f"v_mul_u32_u24 {V(t)}, 11, {V(tap)}")
            a(f"v_lshrrev_b32 {V(t)}, 5, {V(t)}")
            a(f"v_mul_u32_u24 {V(ad)}, 400, {V(tap)}")
            a(f"v_mul_u32_u24 {V(t)}, {1200 - 128}, {V(t)}")
            a(f"v_sub_u32 {V(ad)}, {V(ad)}, {V(t)}")
            a(f"v_lshrrev_b32 {V(t)}, 3, {V(c)}")
            a(f"v_mul_u32_u24 {V(t)}, 1200, {V(t)}")
            a(f"v_add_u32 {V(ad)}, {V(ad)}, {V(t)}")
            a(f"v_and_b32 {V(c)}, 7, {V(c)}")
            a(f"v_lshl_add_u32 {V(ad)}, {V(c)}, 4, {V(ad)}")
            a(f"v_add_u32 {V(ad)}, {DWT}, {V(ad)}")
            a(f"v_lshl_add_u32 {V(c)}, {V(c)}, 1, {V(ad)}")
            a(f"v_lshlrev_b32 {V(e)}, 1, {V(e)}")
        for srd, p, n in ((srdX, sX, XB), (srdW1, sW1, 73728), (srdW2, sW2, 73728), (srdO, sOUT, XB)):
            a(f"s_mov_b32 {S(srd)}, {S(p)}")
            a(f"s_mov_b32 {S(srd + 1)}, {S(p + 1)}")
            a(f"s_mov_b32 {S(srd + 2)}, {n}")
            a(f"s_mov_b32 {S(srd + 3)}, 0x00020000")
        for r in range(28, 32):
            a(f"v_mov_b32 {V(r)}, 0")
        a("s_and_b32 s9, s2, 7")
        a("s_lshl_b32 s9, s9, 12")
        a(f"s_add_u32 {S(sREP)}, {S(sWS)}, s9")
        a(f"s_addc_u32 {S(sREP + 1)}, {S(sWS + 1)}, 0")
        a(f"s_lshl_b32 s9, {S(sW)}, 12")
        a(f"s_add_u32 {S(sREPW)}, {S(sWS)}, s9")
        a(f"s_addc_u32 {S(sREPW + 1)}, {S(sWS + 1)}, 0")
        a(f"s_lshr_b32 s9, s2, 3")
        a(f"s_or_b32 {S(sINIT)}, s9, {S(sW)}")
        a(f"s_cmp_lg_u32 {S(sINIT)}, 0")
        a("s_cbranch_scc1 L_noinit")
        snap = a.snapshot()
        a(f"v_lshlrev_b32 {V(vT1)}, 4, {V(vLANE)}")
        a(f"global_store_dwordx4 {V(vT1)}, v[28:31], {S(sREP, 2)} sc0 sc1")
        a(f"global_store_dwordx4 {V(vT1)}, v[28:31], {S(sREP, 2)} offset:1024 sc0 sc1")
        a(f"global_store_dwordx4 {V(vT1)}, v[28:31], {S(sREP, 2)} offset:2048 sc0 sc1")
        a.restore(snap)
        a.label("L_noinit")
        a(f"global_load_ushort v21, v16, {S(sDW, 2)}")
        a(f"global_load_ushort v27, v22, {S(sDW, 2)}")
        self.dma_rows(range(0, 4), "r0")
        a(f"s_and_b32 s12, {S(sW)}, 3")
        a(f"s_lshr_b32 s13, {S(sW)}, 2")
        a(f"s_mul_i32 s9, s12, {3 * 64}")
        a(f"s_mul_i32 s10, s13, {3 * 12288}")
        a("s_add_u32 s9, s9, s10")
        a(f"v_lshrrev_b32 {V(vT1)}, 2, {V(vLANE)}")
        a(f"v_mul_u32_u24 {V(vT1)}, 768, {V(vT1)}")
        a(f"v_and_b32 {V(vT2)}, 3, {V(vLANE)}")
        a(f"v_lshl_add_u32 {V(vT1)}, {V(vT2)}, 4, {V(vT1)}")
        a(f"v_add_u32 {V(vT1)}, s9, {V(vT1)}")
        a(f"s_mul_i32 s14, s12, {3 * 6144}")
        a(f"s_mul_i32 s10, s13, {3 * 1024}")
        a("s_add_u32 s15, s14, s10")
        for gi in range(3):
            for mi in range(3):
                a(f"s_add_u32 m0, s15, {W_OFF + gi * 6144 + mi * 1024}")
                a(f"s_mov_b32 s9, {mi * 12288 + gi * 64}")
                a(f"buffer_load_dwordx4 {V(vT1)}, {S(srdW1, 4)}, s9 offen lds", tag="w1")
        self.dma_rows(range(4, 10), "r1")
        a("ds_write_b128 v19, v[28:31]")
        a("ds_write_b128 v25, v[28:31]")
        nz = 36 + (LDS_END - ZERO) // 16
        a(f"v_min_u32 {V(vT1)}, {nz - 1}, v0")
        a(f"v_mul_u32_u24 {V(vT2)}, 400, {V(vT1)}")
        a(f"v_add_u32 {V(vT2)}, {DWT + 384}, {V(vT2)}")
        a(f"v_lshlrev_b32 {V(vT3)}, 4, {V(vT1)}")
        a(f"v_add_u32 {V(vT3)}, {ZERO - 36 * 16}, {V(vT3)}")
        a(f"v_cmp_gt_u32 vcc, 36, {V(vT1)}")
        a(f"v_cndmask_b32 {V(vT2)}, {V(vT3)}, {V(vT2)}, vcc")
        a(f"ds_write_b128 {V(vT2)}, v[28:31]")
        a(f"s_mov_b32 {S(sCC)}, {f2u(CC):#x}")
        a(f"s_mov_b32 {S(sCC + 1)}, {f2u(CC):#x}")
        a(f"v_lshrrev_b32 {V(vT1)}, 2, {V(vLANE)}")
        a(f"v_and_b32 {V(vT1)}, 1, {V(vT1)}")
        a(f"v_lshrrev_b32 {V(vT2)}, 4, {V(vLANE)}")
        a(f"v_sub_u32 {V(vT2)}, {V(vT2)}, {V(vT1)}")
        a(f"v_and_b32 {V(vT2)}, 3, {V(vT2)}")
        a(f"v_lshrrev_b32 {V(vT1)}, 1, {V(vLANE)}")
        a(f"v_and_b32 {V(vT1)}, 4, {V(vT1)}")
        a(f"v_and_b32 {V(vT3)}, 3, {V(vLANE)}")
        a(f"v_or_b32 {V(vT1)}, {V(vT1)}, {V(vT3)}")
        a(f"v_cmp_eq_u32 vcc, 3, {V(vT2)}")
        a(f"v_cndmask_b32 {V(vT1)}, {V(vT1)}, v28, vcc")
        a(f"v_lshlrev_b32 {V(vT2)}, 7, {V(vT2)}")
        a(f"v_lshl_add_u32 {V(vAA)}, {V(vT1)}, 4, {V(vT2)}")
        a(f"v_add_u32 {V(vAA)}, {DWT}, {V(vAA)}")
        a(f"v_lshrrev_b32 {V(vT1)}, 5, {V(vLANE)}")
        a(f"v_lshlrev_b32 {V(vWLO)}, 8, {V(vT1)}")
        a(f"v_bfe_u32 {V(vT1)}, {V(vLANE)}, 2, 2")
        a(f"v_lshl_add_u32 {V(vWLO)}, {V(vT1)}, 6, {V(vWLO)}")
        a(f"v_bfe_u32 {V(vT1)}, {V(vLANE)}, 4, 1")
        a(f"v_lshl_add_u32 {V(vWLO)}, {V(vT1)}, 5, {V(vWLO)}")
        a(f"v_lshl_add_u32 {V(vWLO)}, {V(vT3)}, 3, {V(vWLO)}")
        a(f"v_add_u32 {V(vWHI)}, s14, {V(vWLO)}")
        a(f"v_and_b32 {V(vT1)}, 31, {V(vLANE)}")
        a(f"v_lshlrev_b32 {V(vSUMA)}, 3, {V(vT1)}")
        a(f"s_mul_i32 s9, s12, {3 * 256}")
        a(f"s_add_u32 s9, s9, {SUM}")
        a(f"v_add_u32 {V(vSUMA)}, s9, {V(vSUMA)}")
        self.tile_setup(0)
        a("ds_write_b16 v18, v21")
        a("ds_write_b16 v24, v27")

    def tile_setup(self, st):
        a = self.a
        if st == 0:
            a("s_mov_b32 s12, 0")
            a(f"s_lshr_b32 s13, {S(sW)}, 2")
        else:
            a(f"s_lshr_b32 s12, {S(sW)}, 1")
            a(f"s_add_u32 s12, s12, {1 if st == 1 else 5}")
            a(f"s_and_b32 s13, {S(sW)}, 1")
        a("s_lshl_b32 s12, s12, 1")
        a(f"s_add_u32 s9, {S(sROW0)}, s12")
        a("s_cmp_ge_u32 s9, 384")
        a("s_cselect_b32 s10, 384, 0")
        a("s_cselect_b32 s15, 1, 0")
        a("s_sub_u32 s9, s9, s10")
        a(f"s_add_u32 s15, s15, {S(sSTRIP)}")
        a("s_lshl_b32 s15, s15, 1")
        a("s_add_u32 s15, s15, s13")
        a(f"s_mul_i32 {S(sTB[st])}, s9, 73728")
        a(f"s_mul_i32 s10, s15, {16 * 192}")
        a(f"s_add_u32 {S(sTB[st])}, {S(sTB[st])}, s10")
        a("s_cmp_eq_u32 s9, 0")
        a(f"s_cselect_b32 {S(sM1)}, 0xffff, 0")
        a("s_cmp_eq_u32 s9, 382")
        a(f"s_cselect_b32 {S(sM1 + 1)}, 0xffff0000, 0")
        a("s_cmp_eq_u32 s15, 0")
        a("s_cselect_b32 s10, 0x00010001, 0")
        a(f"s_or_b32 {S(sM0)}, {S(sM1)}, s10")
        a(f"s_or_b32 {S(sM0 + 1)}, {S(sM1 + 1)}, s10")
        a("s_cmp_eq_u32 s15, 23")
        a("s_cselect_b32 s10, 0x80008000, 0")
        a(f"s_or_b32 {S(sM2)}, {S(sM1)}, s10")
        a(f"s_or_b32 {S(sM2 + 1)}, {S(sM1 + 1)}, s10")
        a(f"s_mul_i32 s10, s13, {16 * 208}")
        a(f"s_add_u32 s10, s10, {RING}")
        a(f"v_lshrrev_b32 {V(vT0)}, 4, {V(vLANE)}")
        a(f"v_add_u32 {V(vT0)}, s12, {V(vT0)}")
        a(f"v_subrev_u32 {V(vT1)}, 10, {V(vT0)}")
        a(f"v_min_u32 {V(vT0)}, {V(vT0)}, {V(vT1)}")
        a(f"v_mul_u32_u24 {V(vT0)}, {ROWB}, {V(vT0)}")
        a(f"v_and_b32 {V(vT1)}, 15, {V(vLANE)}")
        a(f"v_mul_u32_u24 {V(vT1)}, 208, {V(vT1)}")
        a(f"v_add3_u32 {V(vT0)}, {V(vT0)}, {V(vT1)}, s10")
        a(f"v_mov_b32 {V(vT2)}, {ZERO}")
        a(f"v_add_u32 {V(vAB + 1)}, 208, {V(vT0)}")
        a(f"v_add_u32 {V(vAB + 2)}, 416, {V(vT0)}")
        a(f"v_cndmask_b32 {V(vAB)}, {V(vT0)}, {V(vT2)}, {S(sM0, 2)}")
        a(f"v_cndmask_b32 {V(vAB + 1)}, {V(vAB + 1)}, {V(vT2)}, {S(sM1, 2)}")
        a(f"v_cndmask_b32 {V(vAB + 2)}, {V(vAB + 2)}, {V(vT2)}, {S(sM2, 2)}")

    def conv_ln(self):
        a = self.a
        NB = 5
        steps = [(g, j) for g in range(12) for j in range(3)]

        def rd(n):
            g, j = steps[n]
            b = vCBUF + 8 * (n % NB)
            a(f"ds_read_b128 {V(b, 4)}, {V(vAA)} offset:{(3 * g + j) * 400}")
            a(f"ds_read_b128 {V(b + 4, 4)}, {V(vAB + j)} offset:{g * 16}")

        for n in range(NB):
            rd(n)
        for n, (g, j) in enumerate(steps):
            b = vCBUF + 8 * (n % NB)
            acc = V(vCACC + 4 * g, 4)
            a(f"v_mfma_f32_16x16x32_bf16 {acc}, {V(b, 4)}, {V(b + 4, 4)}, {acc if j else 0}")
            if n + NB < len(steps):
                rd(n + NB)
        s1a, s1b, s2a, s2b = 10, 12, 14, 16
        P = lambda i: V(vCACC + 2 * i, 2)
        a(f"v_pk_add_f32 {V(s1a, 2)}, {P(0)}, {P(1)}")
        a(f"v_pk_mul_f32 {V(s2a, 2)}, {P(0)}, {P(0)}")
        a(f"v_pk_add_f32 {V(s1b, 2)}, {P(2)}, {P(3)}")
        a(f"v_pk_mul_f32 {V(s2b, 2)}, {P(1)}, {P(1)}")
        a(f"v_pk_fma_f32 {V(s2a, 2)}, {P(2)}, {P(2)}, {V(s2a, 2)}")
        a(f"v_pk_fma_f32 {V(s2b, 2)}, {P(3)}, {P(3)}, {V(s2b, 2)}")
        for i in range(4, 24):
            x, y = (s1a, s2a) if i % 2 == 0 else (s1b, s2b)
            a(f"v_pk_add_f32 {V(x, 2)}, {V(x, 2)}, {P(i)}")
            a(f"v_pk_fma_f32 {V(y, 2)}, {P(i)}, {P(i)}, {V(y, 2)}")
        a(f"v_pk_add_f32 {V(s1a, 2)}, {V(s1a, 2)}, {V(s1b, 2)}")
        a(f"v_pk_add_f32 {V(s2a, 2)}, {V(s2a, 2)}, {V(s2b, 2)}")
        a(f"v_add_f32 v10, v10, v11")
        a(f"v_add_f32 v14, v14, v15")
        a(f"v_mov_b32 v11, v10")
        a(f"v_mov_b32 v15, v14")
        a("v_permlane32_swap_b32 v10, v11")
        a("v_permlane32_swap_b32 v14, v15")
        a("v_add_f32 v10, v10, v11")
        a("v_add_f32 v14, v14, v15")
        a(f"v_mul_f32 v10, {f2u(1.0 / 96):#x}, v10")
        a(f"v_mul_f32 v14, {f2u(1.0 / 96):#x}, v14")
        a("v_fma_f32 v14, -v10, v10, v14")
        a("v_max_f32 v14, 0, v14")
        a(f"v_add_f32 v14, {f2u(1e-5):#x}, v14")
        a("v_rsq_f32 v14, v14")
        a(f"v_mul_f32 v12, {f2u(-AS):#x}, v14")
        a("v_mul_f32 v13, -v10, v12")
        for i in range(24):
            a(f"v_pk_fma_f32 {P(i)}, {P(i)}, v[12:13], v[12:13] op_sel:[0,0,1] op_sel_hi:[1,0,1]")
            if i >= 1:
                k = i - 1
                a(f"v_cvt_pk_bf16_f32 {V(vY + k)}, {V(vCACC + 2 * k)}, {V(vCACC + 2 * k + 1)}")
        a(f"v_cvt_pk_bf16_f32 {V(vY + 23)}, {V(vCACC + 46)}, {V(vCACC + 47)}")

    def gemm1_gelu(self, tiles, after=None):
        a = self.a
        nt = len(tiles)
        seq = [(n, m) for n in range(nt) for m in range(6)]

        def rd(k):
            if k >= len(seq):
                return
            n, m = seq[k]
            b = vF + 4 * (k % 3)
            t = tiles[n]
            a(f"ds_read_b64_tr_b16 {V(b, 2)}, {V(t['base'])} offset:{t['off'] + m * 1024}")
            a(f"ds_read_b64_tr_b16 {V(b + 2, 2)}, {V(t['base'])} offset:{t['off'] + m * 1024 + 512}")

        def mm(k):
            if k >= len(seq):
                return
            n, m = seq[k]
            b = vF + 4 * (k % 3)
            d = V(vD[n % 2], 16)
            a(f"v_mfma_f32_32x32x16_bf16 {d}, {V(vY + 4 * m, 4)}, {V(b, 4)}, {d if m else 0}")
            rd(k + 3)

        def window(op, ks):
            if len(ks) > 0:
                mm(ks[0])
            for i in range(3):
                a(f"{op} {V(vG + i)}, {V(vG + i)}")
            if len(ks) > 1:
                mm(ks[1])
            for i in range(3, 8):
                a(f"{op} {V(vG + i)}, {V(vG + i)}")

        for k in range(3):
            rd(k)
        for k in range(6):
            mm(k)
        for n in range(nt):
            d = vD[n % 2]
            dst = tiles[n]["dst"]
            k0 = 6 * (n + 1)
            nxt = n + 1 < nt
            for hf in range(2):
                dd = d + 8 * hf
                for i in range(4):
                    a(f"v_pk_fma_f32 {V(vG + 2 * i, 2)}, {V(dd + 2 * i, 2)}, {V(dd + 2 * i, 2)}, {S(sCC, 2)}")
                for i in range(4):
                    a(f"v_pk_mul_f32 {V(vG + 2 * i, 2)}, {V(vG + 2 * i, 2)}, {V(dd + 2 * i, 2)}")
                window("v_exp_f32", ([k0, k0 + 1] if hf == 0 else [k0 + 4, k0 + 5]) if nxt else [])
                for i in range(4):
                    a(f"v_pk_add_f32 {V(vG + 2 * i, 2)}, {V(vG + 2 * i, 2)}, 1.0 op_sel_hi:[1,0]")
                window("v_rcp_f32", [k0 + 2, k0 + 3] if (hf == 0 and nxt) else [])
                for i in range(4):
                    a(f"v_pk_mul_f32 {V(vG + 2 * i, 2)}, {V(vG + 2 * i, 2)}, {V(dd + 2 * i, 2)}")
                for i in range(4):
                    a(f"v_cvt_pk_bf16_f32 {V(dst + 4 * hf + i)}, {V(vG + 2 * i)}, {V(vG + 2 * i + 1)}")
                for i in range(4):
                    p = V(dst + 4 * hf + i)
                    a(f"v_dot2_f32_bf16 {V(vSQ)}, {p}, {p}, {0 if (hf == 0 and i == 0) else V(vSQ)}")
            a(f"v_cvt_f64_f32 {V(vT1, 2)}, {V(vSQ)}")
            a(f"ds_add_f64 {V(vSUMA)}, {V(vT1, 2)} offset:{tiles[n]['soff']}")
            if after:
                after(n)

    def dump(self, regs, slot):
        a = self.a
        n = len(regs)
        a.wait(vm=0, lgkm=0)
        a.settle()
        a(f"s_lshl_b32 s9, {S(sB)}, 3")
        a(f"s_add_u32 s9, s9, {S(sW)}")
        a(f"s_mul_i32 s9, s9, {256 * 256}")
        a(f"s_add_u32 s9, s9, {(1 << 20) + slot * 256}")
        a(f"v_lshlrev_b32 {V(vSP + 3)}, 2, {V(vLANE)}")
        a(f"v_add_u32 {V(vSP + 3)}, s9, {V(vSP + 3)}")
        for i, r in enumerate(regs):
            a(f"global_store_dword {V(vSP + 3)}, {V(r)}, {S(sWS, 2)}")
            a(f"v_add_u32 {V(vSP + 3)}, 256, {V(vSP + 3)}")
        a.wait(vm=0)

    def build(self):
        a = self.a
        self.prologue()
        a.wait_vm_tag("r0")
        a(f"s_cmp_lg_u32 {S(sINIT)}, 0")
        a("s_cbranch_scc1 L_noflag")
        snap = a.snapshot()
        a(f"v_mov_b32 {V(vT2)}, 1")
        a("s_mov_b64 exec, 1")
        a(f"global_atomic_add v28, {V(vT2)}, {S(sDBG, 2)}")
        a("s_mov_b64 exec, -1")
        a.restore(snap)
        a.label("L_noflag")
        a.barrier()
        self.stamp()
        self.conv_ln()
        if self.debug == "y0":
            self.dump(list(range(vY, vY + 24)), 0)
        a.wait_vm_tag("w1")
        a.barrier()
        self.stamp()
        self.dma_rows(range(10, 12), "r1")
        self.gemm1_gelu([dict(base=vWHI, off=gi * 6144, soff=gi * 256, dst=vHSH + 8 * gi) for gi in range(3)])
        if self.debug == "h0":
            self.dump(list(range(vHSH, vHSH + 24)), 0)
        a(f"v_add_u32 {V(vWHI)}, {6 * 6144}, {V(vWLO)}")
        a(f"v_and_b32 {V(vSUMA)}, 31, {V(vLANE)}")
        a(f"v_lshlrev_b32 {V(vSUMA)}, 3, {V(vSUMA)}")
        a(f"v_add_u32 {V(vSUMA)}, {SUM}, {V(vSUMA)}")

        def own(dstf):
            return [dict(base=vWLO if g < 6 else vWHI, off=(g % 6) * 6144, soff=g * 256, dst=dstf(g))
                    for g in range(12)]

        self.tile_setup(1)
        self.stamp()
        a.wait_vm_tag("r1")
        a.barrier()
        self.stamp()
        self.conv_ln()
        if self.debug == "y1":
            self.dump(list(range(vY, vY + 24)), 0)
        a.barrier()
        self.stamp()
        self.dma_rows(range(12, 20), "r2")
        a(f"v_mov_b32 {V(vT0)}, 0")
        a(f"global_load_dword {V(vSP)}, {V(vT0)}, {S(sDBG, 2)} sc1", tag="r2")
        self.gemm1_gelu(own(lambda g: vH1 + 8 * g))
        if self.debug == "h1":
            self.dump(list(range(vH1, vH1 + 96)), 0)
        self.tile_setup(2)
        self.stamp()
        a.wait_vm_tag("r2")
        a.barrier()
        self.conv_ln()
        if self.debug == "y2":
            self.dump(list(range(vY, vY + 24)), 0)
        vHW0, vHW1 = vAB, vAB + 1
        a(f"v_lshrrev_b32 {V(vT1)}, 5, {V(vLANE)}")
        a(f"v_lshlrev_b32 {V(vT1)}, 1, {V(vT1)}")
        a(f"v_bfe_u32 {V(vT2)}, {V(vLANE)}, 1, 2")
        a(f"v_xor_b32 {V(vT1)}, {V(vT1)}, {V(vT2)}")
        a(f"v_and_b32 {V(vT2)}, 31, {V(vLANE)}")
        a(f"v_lshlrev_b32 {V(vT2)}, 6, {V(vT2)}")
        a(f"v_lshl_add_u32 {V(vT1)}, {V(vT1)}, 4, {V(vT2)}")
        a(f"s_mul_i32 s9, {S(sW)}, {3 * 2048}")
        a(f"s_add_u32 s9, s9, {HSH}")
        a(f"v_add_u32 {V(vT2)}, s9, {V(vT1)}")
        a(f"v_xor_b32 {V(vT3)}, 16, {V(vT2)}")
        a(f"s_lshl_b32 s9, {S(sW)}, 12")
        a(f"s_add_u32 s9, s9, {HOV}")
        a(f"v_add_u32 {V(vHW0)}, s9, {V(vT1)}")
        a(f"v_xor_b32 {V(vHW1)}, 16, {V(vHW0)}")
        a.barrier()
        self.stamp()
        for gi in range(3):
            a(f"ds_write_b128 {V(vT2)}, {V(vHSH + 8 * gi, 4)} offset:{gi * 2048}")
            a(f"ds_write_b128 {V(vT3)}, {V(vHSH + 8 * gi + 4, 4)} offset:{gi * 2048}")

        for r in range(4):
            a(f"v_mov_b32 {V(vG + r)}, 0")
        a(f"v_min_u32 {V(vT1)}, 29, {V(vLANE)}")
        a(f"s_mul_i32 s9, {S(sW)}, 480")
        a(f"s_add_u32 s9, s9, {TOT}")
        a(f"v_lshl_add_u32 {V(vT1)}, {V(vT1)}, 4, s9")
        a(f"ds_write_b128 {V(vT1)}, {V(vG, 4)}")

        def dst2(g):
            return vD[g % 2] if g in (0, 1) else h2reg(g)

        def after2(n):
            if n in (0, 1):
                a(f"ds_write_b128 {V(vHW0)}, {V(vD[n], 4)} offset:{n * 2048}")
                a(f"ds_write_b128 {V(vHW1)}, {V(vD[n] + 4, 4)} offset:{n * 2048}")

        self.gemm1_gelu(own(dst2), after=after2)
        self.stamp()
        a.barrier()
        self.publish_and_shadow(vHW0, vHW1)
        self.phase2(vHW0, vHW1)
        if self.stamps:
            self.stamp()
            self.write_stamps()
        a.label("L_end")
        a("s_endpgm")

    def spin(self, label, ptr, off, expect, first_reg=None):
        a = self.a
        a(f"v_mov_b32 {V(vT0)}, 0")
        a("s_mov_b32 s10, 0")
        if first_reg is not None:
            a(f"v_readfirstlane_b32 s9, {V(first_reg)}")
            a(f"s_cmp_ge_u32 s9, {expect}")
            a(f"s_cbranch_scc1 {label}_done")
        a.settle()
        a.label(f"{label}_loop")
        a(f"global_load_dword {V(vT1)}, {V(vT0)}, {S(ptr, 2)} offset:{off} sc1")
        a.wait(vm=0)
        a(f"v_readfirstlane_b32 s9, {V(vT1)}")
        a(f"s_cmp_ge_u32 s9, {expect}")
        a(f"s_cbranch_scc1 {label}_done")
        a("s_sleep 1")
        a("s_add_u32 s10, s10, 1")
        a("s_cmp_lt_u32 s10, 0x40000")
        a(f"s_cbranch_scc1 {label}_loop")
        a.label(f"{label}_done")
        a.settle()

    def publish_and_shadow(self, vHW0, vHW1):
        a = self.a
        self.spin("L_init", sDBG, 0, 8, first_reg=vSP)
        a(f"s_cmp_lg_u32 {S(sW)}, 7")
        a("s_cbranch_scc1 L_nopub")
        snap = a.snapshot()
        a(f"v_lshlrev_b32 {V(vT2)}, 2, {V(vLANE)}")
        a(f"v_lshlrev_b32 {V(vT3)}, 3, {V(vLANE)}")
        a(f"v_add_u32 {V(vT3)}, {SUM}, {V(vT3)}")
        for i in range(6):
            a(f"ds_read_b64 {V(vG + 2 * i, 2)}, {V(vT3)} offset:{i * 512}")
        for i in range(6):
            a(f"v_cvt_f32_f64 {V(vG + i)}, {V(vG + 2 * i, 2)}")
        for i in range(6):
            a(f"global_atomic_add_f32 {V(vT2)}, {V(vG + i)}, {S(sREP, 2)} offset:{i * 256}")
        a.wait(vm=0)
        a(f"v_mov_b32 {V(vT1)}, 1")
        a("s_mov_b64 exec, 1")
        a(f"global_atomic_add {V(vT0)}, {V(vT1)}, {S(sREP, 2)} offset:2048")
        a("s_mov_b64 exec, -1")
        a.restore(snap)
        a.settle()
        a.label("L_nopub")
        a(f"v_lshrrev_b32 {V(vT1)}, 2, {V(vLANE)}")
        a(f"v_mul_u32_u24 {V(vT1)}, 192, {V(vT1)}")
        a(f"v_and_b32 {V(vT2)}, 3, {V(vLANE)}")
        a(f"v_lshl_add_u32 {V(vT1)}, {V(vT2)}, 4, {V(vT1)}")
        a(f"s_mul_i32 s14, {S(sW)}, 9216")
        a(f"v_add_u32 {V(vT1)}, s14, {V(vT1)}")
        for kk in range(3):
            for G in range(3):
                a(f"s_add_u32 m0, s14, {W_OFF + (kk * 3 + G) * 1024}")
                a(f"s_mov_b32 s9, {kk * 16 * 192 + G * 64}")
                a(f"buffer_load_dwordx4 {V(vT1)}, {S(srdW2, 4)}, s9 offen lds", tag="w2")
        a(f"v_lshlrev_b32 {V(vT1)}, 2, {V(vLANE)}")
        for i in range(3):
            a(f"global_load_dword {V(vSP + i)}, {V(vT1)}, {S(sG, 2)} offset:{i * 256}")
        vI = 84
        vDT = (16, 68)
        a(f"v_and_b32 {V(vT1)}, 31, {V(vLANE)}")
        a(f"v_lshrrev_b32 {V(vT2)}, 5, {V(vLANE)}")
        a(f"v_lshlrev_b32 {V(vT2)}, 4, {V(vT2)}")
        a(f"v_sub_u32 {V(vT1)}, {V(vT1)}, {V(vT2)}")
        a(f"v_and_b32 {V(vT2)}, 1, {V(vT1)}")
        a(f"v_lshlrev_b32 {V(vT2)}, 4, {V(vT2)}")
        a(f"v_mov_b32 {V(vT3)}, 0x3f80")
        a(f"v_lshlrev_b32 {V(vT2)}, {V(vT2)}, {V(vT3)}")
        a(f"v_lshrrev_b32 {V(vT1)}, 1, {V(vT1)}")
        a(f"v_mov_b32 {V(vT3)}, 0")
        for n in range(8):
            a(f"v_cmp_eq_u32 vcc, {n}, {V(vT1)}")
            a(f"v_cndmask_b32 {V(vI + n)}, {V(vT3)}, {V(vT2)}, vcc")
        tl = [vH1 + 8 * g for g in range(12)] + [h2reg(g) for g in range(2, 12)]

        def tm(n):
            d = V(vDT[n % 2], 16)
            a(f"v_mfma_f32_32x32x16_bf16 {d}, {V(tl[n], 4)}, {V(vI, 4)}, 0")
            a(f"v_mfma_f32_32x32x16_bf16 {d}, {V(tl[n] + 4, 4)}, {V(vI + 4, 4)}, {d}")

        tm(0)
        for n in range(len(tl)):
            if n + 1 < len(tl):
                tm(n + 1)
            d = vDT[n % 2]
            for i in range(8):
                a(f"v_cvt_pk_bf16_f32 {V(tl[n] + i)}, {V(d + 2 * i)}, {V(d + 2 * i + 1)}")
        vHR = vAB + 2
        a(f"v_lshrrev_b32 {V(vT1)}, 5, {V(vLANE)}")
        a(f"v_bfe_u32 {V(vT2)}, {V(vLANE)}, 2, 2")
        a(f"v_lshl_add_u32 {V(vT1)}, {V(vT1)}, 2, {V(vT2)}")
        a(f"v_bfe_u32 {V(vT2)}, {V(vT1)}, 1, 2")
        a(f"v_bfe_u32 {V(vT3)}, {V(vLANE)}, 4, 1")
        a(f"v_bfe_u32 {V(vT4)}, {V(vLANE)}, 1, 1")
        a(f"v_lshl_add_u32 {V(vT3)}, {V(vT3)}, 1, {V(vT4)}")
        a(f"v_xor_b32 {V(vT2)}, {V(vT2)}, {V(vT3)}")
        a(f"v_lshlrev_b32 {V(vT1)}, 6, {V(vT1)}")
        a(f"v_lshl_add_u32 {V(vT1)}, {V(vT2)}, 4, {V(vT1)}")
        a(f"v_and_b32 {V(vT2)}, 1, {V(vLANE)}")
        a(f"v_lshl_add_u32 {V(vHR)}, {V(vT2)}, 3, {V(vT1)}")
        a(f"s_lshl_b32 s9, {S(sW)}, 12")
        a(f"s_add_u32 s9, s9, {HOV}")
        a(f"v_add_u32 {V(vT1)}, s9, {V(vHR)}")
        for g in range(2):
            for i in range(4):
                a(f"ds_read_b64_tr_b16 {V(h2reg(g) + 2 * i, 2)}, {V(vT1)} offset:{g * 2048 + i * 512}")
        fr = [16 + 4 * n for n in range(5)] + [68 + 4 * n for n in range(4)]
        self.fr = fr
        a(f"v_add_u32 {V(vWHI)}, s14, {V(vWLO)}")
        a(f"v_lshrrev_b32 {V(vT2)}, 5, {V(vLANE)}")
        a(f"v_lshlrev_b32 {V(vT2)}, 3, {V(vT2)}")
        a(f"s_mul_i32 s9, {S(sW)}, 96")
        a(f"v_add_u32 {V(vT2)}, s9, {V(vT2)}")
        vBF = (84, 88, 12)
        a(f"v_mov_b32 {V(vT0)}, {V(vT2)}")
        for kk in range(3):
            for e in range(2):
                a(f"global_load_dwordx2 {V(vBF[kk] + 2 * e, 2)}, {V(vT0)}, {S(sBB, 2)} offset:{kk * 32 + e * 16}")
        a.wait_vm_tag("w2")
        for n in range(9):
            for e in range(2):
                a(f"ds_read_b64_tr_b16 {V(fr[n] + 2 * e, 2)}, {V(vWHI)} offset:{n * 1024 + e * 512}")
        vBA = (vSUMA, vDMA, vSQ)
        for kk in range(3):
            for i in range(4):
                for G in range(3):
                    c = 0 if (kk == 0 and i == 0) else V(vBA[G])
                    a(f"v_dot2_f32_bf16 {V(vBA[G])}, {V(fr[kk * 3 + G] + i)}, {V(vBF[kk] + i)}, {c}")
        a(f"v_and_b32 {V(vT0)}, 31, {V(vLANE)}")
        a(f"v_lshlrev_b32 {V(vT0)}, 3, {V(vT0)}")
        a(f"v_add_u32 {V(vT0)}, {BIAS64}, {V(vT0)}")
        for G in range(3):
            a(f"v_cvt_f64_f32 {V(84 + 2 * G, 2)}, {V(vBA[G])}")
            a(f"ds_add_f64 {V(vT0)}, {V(84 + 2 * G, 2)} offset:{G * 256}")
        self.stamp()
        a.wait(vm=0, lgkm=0)
        self.spin("L_poll", sREPW, 2048, 32)
        self.stamp()
        a(f"v_lshlrev_b32 {V(vT0)}, 3, {V(vLANE)}")
        for i in range(3):
            a(f"global_load_dwordx2 {V(84 + 2 * i, 2)}, {V(vT0)}, {S(sREPW, 2)} offset:{i * 512} sc1")
        a(f"v_lshlrev_b32 {V(vSUMA)}, 4, {V(vLANE)}")
        a(f"v_add_u32 {V(vSUMA)}, {TOT}, {V(vSUMA)}")
        for i in range(6):
            t = vT1 if i % 2 == 0 else vT3
            a(f"v_cvt_f64_f32 {V(t, 2)}, {V(84 + i)}")
            a(f"ds_add_f64 {V(vSUMA)}, {V(t, 2)} offset:{(i // 2) * 1024 + (i % 2) * 8}")
        a.barrier()
        tt = (84, 88, 12)
        for i in range(3):
            a(f"ds_read_b128 {V(tt[i], 4)}, {V(vSUMA)} offset:{i * 1024}")
        for i in range(3):
            a(f"v_cvt_f32_f64 {V(84 + 2 * i)}, {V(tt[i], 2)}")
            a(f"v_cvt_f32_f64 {V(85 + 2 * i)}, {V(tt[i] + 2, 2)}")
        a(f"v_min_u32 {V(vDMA)}, 47, {V(vLANE)}")
        a(f"v_lshlrev_b32 {V(vDMA)}, 3, {V(vDMA)}")
        a(f"v_lshlrev_b32 {V(vSQ)}, 1, {V(vDMA)}")
        a(f"v_add_u32 {V(vSQ)}, {BIAS64}, {V(vSQ)}")
        a(f"ds_read_b128 {V(12, 4)}, {V(vSQ)}")
        a(f"v_add_u32 {V(vDMA)}, {BIAS}, {V(vDMA)}")
        a(f"v_cvt_f32_f64 v90, v[12:13]")
        a(f"v_cvt_f32_f64 v91, v[14:15]")
        a(f"ds_write_b64 {V(vDMA)}, v[90:91]")
        a(f"s_mov_b32 s9, {f2u(1.0 / (AS * AS)):#x}")
        a(f"v_mov_b32 {V(vT1)}, {f2u(1e-6):#x}")
        for i in range(6):
            a(f"v_fma_f32 {V(84 + i)}, {V(84 + i)}, s9, {V(vT1)}")
        for i in range(6):
            a(f"v_sqrt_f32 {V(84 + i)}, {V(84 + i)}")
        a(f"v_add_f32 {V(vT2)}, v84, v85")
        a(f"v_add_f32 {V(vT3)}, v86, v87")
        a(f"v_add_f32 {V(vT4)}, v88, v89")
        a(f"v_add_f32 {V(vT2)}, {V(vT2)}, {V(vT3)}")
        a(f"v_add_f32 {V(vT2)}, {V(vT2)}, {V(vT4)}")
        for mode in ("quad_perm:[1,0,3,2]", "quad_perm:[2,3,0,1]", "row_half_mirror", "row_mirror"):
            a(f"v_add_f32_dpp {V(vT2)}, {V(vT2)}, {V(vT2)} {mode} row_mask:0xf bank_mask:0xf")
        a(f"v_readlane_b32 s9, {V(vT2)}, 0")
        a(f"v_readlane_b32 s10, {V(vT2)}, 16")
        a(f"v_readlane_b32 s12, {V(vT2)}, 32")
        a(f"v_readlane_b32 s13, {V(vT2)}, 48")
        a(f"v_mov_b32 {V(vT2)}, s9")
        a(f"v_add_f32 {V(vT2)}, s10, {V(vT2)}")
        a(f"v_add_f32 {V(vT2)}, s12, {V(vT2)}")
        a(f"v_add_f32 {V(vT2)}, s13, {V(vT2)}")
        a(f"s_mov_b32 s9, {f2u(1.0 / 384):#x}")
        a(f"v_fma_f32 {V(vT2)}, {V(vT2)}, s9, {V(vT1)}")
        a(f"v_rcp_f32 {V(vT2)}, {V(vT2)}")
        a(f"v_mul_f32 {V(vT2)}, {f2u(-1.0 / AS):#x}, {V(vT2)}")
        a(f"v_mov_b32 {V(vT1)}, {f2u(-1.0 / AS):#x}")
        for i in range(3):
            a(f"v_lshlrev_b32 {V(vT3)}, 16, {V(vSP + i)}")
            a(f"v_and_b32 {V(vT4)}, 0xffff0000, {V(vSP + i)}")
            a(f"v_mul_f32 {V(84 + 2 * i)}, {V(84 + 2 * i)}, {V(vT2)}")
            a(f"v_mul_f32 {V(85 + 2 * i)}, {V(85 + 2 * i)}, {V(vT2)}")
            a(f"v_fma_f32 {V(84 + 2 * i)}, {V(84 + 2 * i)}, {V(vT3)}, {V(vT1)}")
            a(f"v_fma_f32 {V(85 + 2 * i)}, {V(85 + 2 * i)}, {V(vT4)}, {V(vT1)}")
        a(f"v_add_u32 {V(vT3)}, {SUM}, {V(vT0)}")
        for i in range(3):
            a(f"ds_write_b64 {V(vT3)}, {V(84 + 2 * i, 2)} offset:{i * 512}")
        a(f"v_lshrrev_b32 {V(vT0)}, 5, {V(vLANE)}")
        a(f"v_lshlrev_b32 {V(vT0)}, 4, {V(vT0)}")
        a(f"s_mul_i32 s9, {S(sW)}, 192")
        a(f"s_add_u32 s9, s9, {SUM}")
        a(f"v_add_u32 {V(vT0)}, s9, {V(vT0)}")
        a(f"v_and_b32 {V(vWHI)}, 35, {V(vLANE)}")
        a(f"v_bfe_u32 {V(vT1)}, {V(vLANE)}, 4, 1")
        a(f"v_lshl_add_u32 {V(vWHI)}, {V(vT1)}, 2, {V(vWHI)}")
        a(f"v_bfe_u32 {V(vT1)}, {V(vLANE)}, 2, 2")
        a(f"v_lshl_add_u32 {V(vWHI)}, {V(vT1)}, 3, {V(vWHI)}")
        a(f"v_lshlrev_b32 {V(vWHI)}, 4, {V(vWHI)}")
        a(f"v_add_u32 {V(vWHI)}, s14, {V(vWHI)}")
        for kk in range(3):
            a(f"ds_read_b128 {V(84, 4)}, {V(vT0)} offset:{kk * 64}")
            a(f"ds_read_b128 {V(88, 4)}, {V(vT0)} offset:{kk * 64 + 32}")
            for G in range(3):
                f = fr[kk * 3 + G]
                for i in range(4):
                    t = vT1 if i % 2 == 0 else vT3
                    a(f"v_lshlrev_b32 {V(t)}, 16, {V(f + i)}")
                    a(f"v_and_b32 {V(t + 1)}, 0xffff0000, {V(f + i)}")
                    a(f"v_pk_mul_f32 {V(t, 2)}, {V(t, 2)}, {V(84 + 2 * i, 2)}")
                    a(f"v_cvt_pk_bf16_f32 {V(f + i)}, {V(t)}, {V(t + 1)}")
                a(f"ds_write_b128 {V(vWHI)}, {V(f, 4)} offset:{(kk * 3 + G) * 1024}")
        self.vHR = vHR

    def phase2(self, vHW0, vHW1):
        a = self.a
        vACC, vA, vX = 68, 16, 28
        vALO, vAHI = vWLO, vWHI
        vXA, vSA, vBI, vRD = vAA, vSUMA, vDMA, vSQ
        a(f"v_lshlrev_b32 {V(vALO)}, 4, {V(vLANE)}")
        a(f"v_bfe_u32 {V(vT1)}, {V(vLANE)}, 3, 1")
        a(f"v_mul_u32_u24 {V(vXA)}, 73728, {V(vT1)}")
        a(f"v_and_b32 {V(vT1)}, 3, {V(vLANE)}")
        a(f"v_bfe_u32 {V(vT2)}, {V(vLANE)}, 2, 1")
        a(f"v_lshl_add_u32 {V(vT1)}, {V(vT2)}, 3, {V(vT1)}")
        a(f"v_bfe_u32 {V(vT2)}, {V(vLANE)}, 4, 1")
        a(f"v_lshl_add_u32 {V(vT1)}, {V(vT2)}, 2, {V(vT1)}")
        a(f"v_mul_u32_u24 {V(vT1)}, 192, {V(vT1)}")
        a(f"v_add_u32 {V(vXA)}, {V(vXA)}, {V(vT1)}")
        a(f"v_lshrrev_b32 {V(vT1)}, 5, {V(vLANE)}")
        a(f"v_lshl_add_u32 {V(vXA)}, {V(vT1)}, 5, {V(vXA)}")
        a(f"v_lshlrev_b32 {V(vBI)}, 6, {V(vT1)}")
        a(f"v_add_u32 {V(vBI)}, {BIAS}, {V(vBI)}")
        a(f"v_mul_u32_u24 {V(vSA)}, 73728, {V(vT1)}")
        a(f"v_bfe_u32 {V(vT1)}, {V(vLANE)}, 2, 2")
        a(f"v_bfe_u32 {V(vT2)}, {V(vLANE)}, 4, 1")
        a(f"v_lshl_add_u32 {V(vT1)}, {V(vT2)}, 3, {V(vT1)}")
        a(f"v_mul_u32_u24 {V(vT1)}, 192, {V(vT1)}")
        a(f"v_add_u32 {V(vSA)}, {V(vSA)}, {V(vT1)}")
        a(f"v_and_b32 {V(vT1)}, 3, {V(vLANE)}")
        a(f"v_lshl_add_u32 {V(vSA)}, {V(vT1)}, 4, {V(vSA)}")
        a(f"v_bfe_u32 {V(vT2)}, {V(vLANE)}, 3, 2")
        a(f"v_xor_b32 {V(vT1)}, {V(vT1)}, {V(vT2)}")
        a(f"v_lshrrev_b32 {V(vT2)}, 2, {V(vLANE)}")
        a(f"v_lshlrev_b32 {V(vT2)}, 6, {V(vT2)}")
        a(f"v_lshl_add_u32 {V(vRD)}, {V(vT1)}, 4, {V(vT2)}")
        a(f"s_lshl_b32 s9, {S(sW)}, 12")
        a(f"s_add_u32 s9, s9, {HOV}")
        a(f"v_add_u32 {V(vRD)}, s9, {V(vRD)}")
        a.barrier()
        a(f"v_add_u32 {V(vAHI)}, {36 * 1024}, {V(vALO)}")
        self.stamp()
        cnt = [0]

        def unit(tb, G, bfrag, brd=None, goff=True):
            Gx = G if goff else 0
            par = cnt[0] % 2
            cnt[0] += 1
            for e in range(2):
                a(f"buffer_load_dwordx4 {V(vX + 4 * e, 4)}, {V(vXA)}, {S(srdX, 4)}, {S(tb)} offen offset:{Gx * 64 + e * 16}")
            for i in range(4):
                a(f"ds_read_b128 {V(vACC + 4 * i, 4)}, {V(vBI)} offset:{Gx * 128 + i * 16}")

            def rd(ks):
                if ks >= 24:
                    return
                o = (ks * 3 + Gx) * 1024
                base, o = (vALO, o) if ks < 12 else (vAHI, o - 36 * 1024)
                a(f"ds_read_b128 {V(vA + 4 * (ks % 3), 4)}, {V(base)} offset:{o}")
                if brd:
                    brd(ks)

            for ks in range(3):
                rd(ks)
            acc = V(vACC, 16)
            for ks in range(24):
                a(f"v_mfma_f32_32x32x16_bf16 {acc}, {V(vA + 4 * (ks % 3), 4)}, {V(bfrag(ks), 4)}, {acc}")
                rd(ks + 3)
            for i in range(8):
                t = vT1 if i % 2 == 0 else vT3
                a(f"v_lshlrev_b32 {V(t)}, 16, {V(vX + i)}")
                a(f"v_and_b32 {V(t + 1)}, 0xffff0000, {V(vX + i)}")
                a(f"v_add_f32 {V(t)}, {V(t)}, {V(vACC + 2 * i)}")
                a(f"v_add_f32 {V(t + 1)}, {V(t + 1)}, {V(vACC + 2 * i + 1)}")
                a(f"v_cvt_pk_bf16_f32 {V(84 + i)}, {V(t)}, {V(t + 1)}")
            a(f"ds_write_b128 {V(vHW0)}, {V(84, 4)} offset:{par * 2048}")
            a(f"ds_write_b128 {V(vHW1)}, {V(88, 4)} offset:{par * 2048}")
            for i in range(2):
                a(f"ds_read_b128 {V(84 + 4 * i, 4)}, {V(vRD)} offset:{par * 2048 + i * 1024}")
            for i in range(2):
                a(f"buffer_store_dwordx4 {V(84 + 4 * i, 4)}, {V(vSA)}, {S(srdO, 4)}, {S(tb)} offen offset:{i * 768 + Gx * 64} nt")

        for G in range(3):
            unit(sTB[1], G, lambda ks: vH1 + 8 * (ks // 2) + 4 * (ks % 2))
        for G in range(3):
            unit(sTB[2], G, lambda ks: h2reg(ks // 2) + 4 * (ks % 2))
        a(f"s_cmp_ge_u32 {S(sW)}, 6")
        a("s_cbranch_scc1 L_fin")
        a(f"s_cmp_ge_u32 {S(sW)}, 3")
        a("s_cselect_b32 s12, 1, 0")
        a("s_mul_i32 s13, s12, 3")
        a(f"s_sub_u32 s13, {S(sW)}, s13")
        a(f"s_mul_i32 s9, {S(sROW0)}, 73728")
        a(f"s_mul_i32 s10, {S(sSTRIP)}, 6144")
        a("s_add_u32 s9, s9, s10")
        a("s_mul_i32 s10, s12, 3072")
        a("s_add_u32 s9, s9, s10")
        a("s_lshl_b32 s10, s13, 6")
        a(f"s_add_u32 {S(sTB[0])}, s9, s10")
        a("s_lshl_b32 s9, s13, 10")
        a(f"v_add_u32 {V(vALO)}, s9, {V(vALO)}")
        a(f"v_add_u32 {V(vAHI)}, s9, {V(vAHI)}")
        a("s_lshl_b32 s9, s13, 7")
        a(f"v_add_u32 {V(vBI)}, s9, {V(vBI)}")
        a(f"s_mul_i32 s9, s12, {12 * 2048}")
        a(f"s_add_u32 s9, s9, {HSH}")
        a(f"v_add_u32 {V(self.vHR)}, s9, {V(self.vHR)}")
        vBB = vH1

        def brd(ks):
            for e in range(2):
                a(f"ds_read_b64_tr_b16 {V(vBB + 4 * (ks % 3) + 2 * e, 2)}, {V(self.vHR)} offset:{ks * 1024 + e * 512}")

        unit(sTB[0], 0, lambda ks: vBB + 4 * (ks % 3), brd=brd, goff=False)
        a.settle()
        a.label("L_fin")

    def write_stamps(self):
        a = self.a
        a.wait(vm=0, lgkm=0)
        a(f"{self.clk} {S(sTS + 2 * self.nts, 2)}")
        self.nts += 1
        a.wait(lgkm=0)
        a(f"s_lshl_b32 s9, {S(sB)}, 3")
        a(f"s_add_u32 s9, s9, {S(sW)}")
        a("s_lshl_b32 s9, s9, 6")
        a(f"s_add_u32 s9, s9, {1 << 19}")
        a(f"v_mov_b32 {V(vT0)}, s9")
        a("s_mov_b64 exec, 1")
        for i in range(self.nts):
            if i:
                a(f"s_sub_u32 s10, {S(sTS + 2 * i)}, {S(sTS)}")
                a(f"v_mov_b32 {V(vT1)}, s10")
            else:
                a(f"v_mov_b32 {V(vT1)}, {S(sTS)}")
            a(f"global_store_dword {V(vT0)}, {V(vT1)}, {S(sWS, 2)} offset:{i * 4}")
        a.wait(vm=0)


HEADER = """; Kernarg layout for this problem (72 bytes, ptrs only, base s[0:1]):
; @launch grid=(256,1,1) block=(512,1,1) lds={lds}
.amdgcn_target "amdgcn-amd-amdhsa--gfx950"
.text
.globl {name}_kernel
.p2align 8
.type {name}_kernel,@function
{name}_kernel:
"""

FOOTER = """.section .rodata,"a"
.p2align 6
.amdhsa_kernel {name}_kernel
  .amdhsa_next_free_vgpr 256
  .amdhsa_next_free_sgpr 102
  .amdhsa_accum_offset 256
  .amdhsa_group_segment_fixed_size 0
  .amdhsa_kernarg_size 72
  .amdhsa_user_sgpr_count 2
  .amdhsa_user_sgpr_kernarg_segment_ptr 1
  .amdhsa_system_sgpr_workgroup_id_x 1
.end_amdhsa_kernel
"""


def generate(path, **kw):
    g = Gen(**kw)
    g.build()
    txt = HEADER.format(name=NAME, lds=LDS_BYTES) + g.a.text() + FOOTER.format(name=NAME)
    open(path, "w").write(txt)
    print(path, "instr counts:", g.a.count, "nop states:", g.a.nops, "max vgpr:", g.a.maxv, file=sys.stderr)


if __name__ == "__main__":
    import argparse
    ap = argparse.ArgumentParser()
    ap.add_argument("-o", default=f"cdna_kernels/{NAME}.s")
    ap.add_argument("--debug", default=None)
    ap.add_argument("--stamps", action="store_true")
    args = ap.parse_args()
    generate(args.o, debug=args.debug, stamps=args.stamps)
```

```python
import re

TRANS = ("v_exp_f32", "v_log_f32", "v_rcp_f32", "v_rsq_f32", "v_sqrt_f32", "v_sin_f32", "v_cos_f32")


def _split_ops(s):
    out, depth, cur = [], 0, ""
    for ch in s:
        if ch in "[(":
            depth += 1
        elif ch in "])":
            depth -= 1
        if ch == "," and depth == 0:
            out.append(cur.strip())
            cur = ""
        else:
            cur += ch
    if cur.strip():
        out.append(cur.strip())
    return out


_R1 = re.compile(r"^-?\|?([vsa])(\d+)\|?$")
_RN = re.compile(r"^-?([vsa])\[(\d+):(\d+)\]$")


def regs_of(op):
    op = op.split()[0] if op else op
    m = _R1.match(op)
    if m:
        return [(m.group(1), int(m.group(2)))]
    m = _RN.match(op)
    if m:
        return [(m.group(1), i) for i in range(int(m.group(2)), int(m.group(3)) + 1)]
    if op in ("vcc",):
        return [("vcc", 0), ("vcc", 1)]
    if op == "vcc_lo":
        return [("vcc", 0)]
    if op == "vcc_hi":
        return [("vcc", 1)]
    if op == "exec":
        return [("exec", 0), ("exec", 1)]
    if op == "exec_lo":
        return [("exec", 0)]
    if op == "exec_hi":
        return [("exec", 1)]
    if op == "m0":
        return [("m0", 0)]
    return []


class Ins:
    __slots__ = ("text", "mn", "kind", "rd", "wr", "ops", "states", "passes", "srcc", "srcab", "wide")


def parse(text):
    t = text.split(";")[0].strip()
    parts = t.split(None, 1)
    mn = parts[0]
    ops = _split_ops(parts[1]) if len(parts) > 1 else []
    i = Ins()
    i.text, i.mn, i.ops = text, mn, ops
    i.rd, i.wr = set(), set()
    i.states = 1
    i.passes = 0
    i.srcc = set()
    i.srcab = set()
    i.wide = False
    base = re.sub(r"_(e32|e64|dpp|sdwa)$", "", mn)
    R = [regs_of(o) for o in ops]
    if mn.startswith("v_mfma"):
        i.kind = "mfma"
        i.passes = 8 if "32x32x16" in mn else 4
        assert "32x32x16_bf16" in mn or "16x16x32_bf16" in mn, mn
        i.wr = set(R[0])
        i.srcab = set(R[1]) | set(R[2])
        i.srcc = set(R[3])
        i.rd = i.srcab | i.srcc
    elif mn.startswith("v_"):
        i.kind = "valu"
        if base in TRANS:
            i.kind = "trans"
        if base.startswith("v_dot"):
            i.kind = "dot"
        if base.startswith("v_permlane"):
            i.kind = "permlane"
            i.wr = set(R[0]) | set(R[1])
            i.rd = set(i.wr)
        else:
            i.wr = set(R[0])
            for r in R[1:]:
                i.rd |= set(r)
            if base in ("v_fmac_f32", "v_dot2c_f32_bf16") or mn.endswith("_dpp") or mn.endswith("_sdwa"):
                i.rd |= set(R[0])
            if base.startswith("v_cndmask") and len(ops) == 3:
                i.rd |= {("vcc", 0), ("vcc", 1)}
            if i.kind == "dot" and len(ops) == 4:
                i.srcc = set(R[3])
                i.srcab = set(R[1]) | set(R[2])
            if base == "v_dot2c_f32_bf16":
                i.srcc = set(R[0])
                i.srcab = set(R[1]) | set(R[2])
    elif mn.startswith("ds_"):
        i.kind = "ds"
        if mn.startswith("ds_read"):
            i.wr = set(R[0])
            for r in R[1:]:
                i.rd |= set(r)
            if "d16" in mn:
                i.rd |= set(R[0])
        else:
            for r in R:
                i.rd |= set(r)
    elif mn.startswith("buffer_") or mn.startswith("global_"):
        i.kind = "vmem"
        is_lds = re.search(r"\blds\b", t) is not None
        if "_load" in mn and not is_lds:
            i.wr = set(R[0])
            for r in R[1:]:
                i.rd |= set(r)
            if "d16" in mn:
                i.rd |= set(R[0])
        elif "atomic" in mn and re.search(r"\bsc0\b", t):
            i.wr = set(R[0])
            for r in R[1:]:
                i.rd |= set(r)
        else:
            for r in R:
                i.rd |= set(r)
            if is_lds:
                i.rd.add(("m0", 0))
                i.kind = "vmem_lds"
            if "store" in mn and ("x3" in mn or "x4" in mn):
                i.wide = True
    elif mn.startswith("s_load") or mn.startswith("s_mem"):
        i.kind = "smem"
        i.wr = set(R[0])
        for r in R[1:]:
            i.rd |= set(r)
    elif mn.startswith("s_"):
        i.kind = "salu"
        if mn == "s_nop":
            i.states = int(ops[0], 0) + 1
        elif mn.startswith(("s_cmp", "s_cbranch", "s_branch", "s_barrier", "s_waitcnt", "s_setprio", "s_sleep",
                            "s_endpgm", "s_bitcmp")):
            for r in R:
                i.rd |= set(r)
        else:
            i.wr = set(R[0])
            for r in R[1:]:
                i.rd |= set(r)
            if "saveexec" in mn:
                i.wr |= {("exec", 0), ("exec", 1)}
    else:
        raise ValueError("unknown instruction: " + text)
    return i


VALU_KINDS = ("valu", "trans", "dot", "permlane")


def _need(prev, cur):
    n = 0
    pv = prev.kind in VALU_KINDS
    cv = cur.kind in VALU_KINDS
    cmem = cur.kind in ("ds", "vmem", "vmem_lds")
    pw_v = {r for r in prev.wr if r[0] in "va"}
    pw_s = {r for r in prev.wr if r[0] in ("s", "vcc")}
    if pv:
        if cur.kind == "mfma" and pw_v & cur.rd:
            n = max(n, 3 if prev.kind == "dot" else 2)
        if prev.kind == "trans" and cv and cur.kind != "trans" and pw_v & cur.rd:
            n = max(n, 1)
        if cur.kind == "permlane" and pw_v & cur.rd:
            n = max(n, 2)
        if cur.mn.endswith("_dpp") and pw_v & cur.rd:
            n = max(n, 2)
        if cur.mn.startswith(("v_readfirstlane", "v_readlane")) and pw_v & cur.rd:
            n = max(n, 1)
        if pw_s:
            if cv and pw_s & cur.rd:
                n = max(n, 4 if cur.mn.startswith(("v_readlane", "v_writelane")) else 2)
            if cur.kind in ("vmem", "vmem_lds") and pw_s & cur.rd:
                n = max(n, 5)
            if cur.kind in ("salu", "smem") and pw_s & cur.rd:
                n = max(n, 1)
        if prev.mn.endswith("_sdwa") and cv and pw_v & (cur.rd | cur.wr):
            n = max(n, 1)
        if prev.kind == "dot":
            same = cur.kind == "dot" and cur.mn == prev.mn
            if same:
                if pw_v & cur.srcab:
                    n = max(n, 3)
            elif (cv or cmem) and pw_v & (cur.rd | cur.wr):
                n = max(n, 3)
    if prev.kind == "mfma":
        p = prev.passes
        big = {4: 8, 8: 12}[p]
        if cur.kind == "mfma":
            if prev.wr & cur.srcab:
                n = max(n, big)
            if prev.wr & cur.srcc:
                if not (prev.wr == cur.srcc and cur.passes == p):
                    n = max(n, {4: 6, 8: 10}[p])
            elif prev.wr & cur.wr:
                n = max(n, {4: 6, 8: 10}[p])
        elif cv or cmem:
            if prev.wr & (cur.rd | cur.wr):
                n = max(n, big)
            if cv and prev.srcc & cur.wr:
                n = max(n, {4: 3, 8: 7}[p])
    if prev.kind == "salu":
        if ("m0", 0) in prev.wr and cur.kind == "vmem_lds":
            n = max(n, 1)
    if prev.wide and (cv or cur.kind in ("ds", "vmem", "mfma")):
        data = {r for r in prev.rd if r[0] == "v"}
        if data & cur.wr:
            n = max(n, 2)
    return n


class Asm:
    def __init__(self):
        self.out = []
        self.hist = []
        self.lgkm = []
        self.vm = []
        self.smem_pending = set()
        self.nops = 0
        self.count = {}
        self.maxv = 0

    def raw(self, text):
        self.out.append(text)

    def comment(self, text):
        self.out.append("    ; " + text)

    def _push(self, ins):
        self.out.append("    " + ins.text)
        self.hist.append(ins)
        if len(self.hist) > 32:
            self.hist.pop(0)
        self.count[ins.kind] = self.count.get(ins.kind, 0) + 1
        for r in ins.rd | ins.wr:
            if r[0] == "v":
                self.maxv = max(self.maxv, r[1])

    def _wait(self, vm=None, lgkm=None):
        parts = []
        if vm is not None:
            assert 0 <= vm <= 63
            parts.append(f"vmcnt({vm})")
            del self.vm[: max(0, len(self.vm) - vm)]
        if lgkm is not None:
            assert 0 <= lgkm <= 15
            parts.append(f"lgkmcnt({lgkm})")
            del self.lgkm[: max(0, len(self.lgkm) - lgkm)]
            if lgkm == 0:
                self.smem_pending = set()
        self._push(parse("s_waitcnt " + " ".join(parts)))

    def wait(self, vm=None, lgkm=None):
        self._wait(vm, lgkm)

    def wait_vm_tag(self, tag):
        idx = [k for k, (_, t) in enumerate(self.vm) if t == tag]
        if idx:
            self._wait(vm=len(self.vm) - 1 - idx[-1])

    def __call__(self, text, tag=None):
        ins = parse(text)
        touched = ins.rd | ins.wr
        need_l = None
        for k, d in enumerate(self.lgkm):
            if d & touched:
                need_l = len(self.lgkm) - 1 - k
        if self.smem_pending & touched:
            need_l = 0
        if need_l is not None and self.smem_pending:
            need_l = 0
        need_v = None
        for k, (d, _) in enumerate(self.vm):
            if d & touched:
                need_v = len(self.vm) - 1 - k
        if ins.kind == "ds" and len(self.lgkm) >= 15 and need_l is None:
            need_l = 14
        if ins.kind in ("vmem", "vmem_lds") and len(self.vm) >= 63 and need_v is None:
            need_v = 62
        if need_l is not None and need_l > 15:
            need_l = 15
        if need_l is not None or need_v is not None:
            self._wait(need_v, need_l)
        dist, need = 0, 0
        for prev in reversed(self.hist):
            n = _need(prev, ins)
            need = max(need, n - dist)
            dist += prev.states
            if dist >= 20:
                break
        while need > 0:
            k = min(need, 16)
            self._push(parse(f"s_nop {k - 1}"))
            self.nops += k
            need -= k
        self._push(ins)
        if ins.kind == "ds":
            self.lgkm.append(set(ins.wr))
        elif ins.kind in ("vmem", "vmem_lds"):
            self.vm.append((set(ins.wr), tag))
        elif ins.kind == "smem":
            self.smem_pending |= ins.wr
            self.smem_pending.add(("smem", 0))

    def need(self, regs):
        touched = set(regs)
        need_l = need_v = None
        for k, d in enumerate(self.lgkm):
            if d & touched:
                need_l = len(self.lgkm) - 1 - k
        if need_l is not None and self.smem_pending:
            need_l = 0
        for k, (d, _) in enumerate(self.vm):
            if d & touched:
                need_v = len(self.vm) - 1 - k
        if need_l is not None or need_v is not None:
            self._wait(need_v, need_l)

    def label(self, name):
        self.out.append(f"{name}:")

    def settle(self):
        self._push(parse("s_nop 15"))
        self._push(parse("s_nop 3"))

    def barrier(self, vm=None):
        self._wait(vm=vm, lgkm=0)
        self._push(parse("s_barrier"))

    def snapshot(self):
        return (list(self.lgkm), list(self.vm), set(self.smem_pending))

    def restore(self, snap):
        self.lgkm, self.vm, self.smem_pending = list(snap[0]), list(snap[1]), set(snap[2])

    def text(self):
        return "\n".join(self.out) + "\n"


def V(a, n=1):
    return f"v{a}" if n == 1 else f"v[{a}:{a + n - 1}]"


def S(a, n=1):
    return f"s{a}" if n == 1 else f"s[{a}:{a + n - 1}]"


_PROMO = ("v_exp_f32", "v_rcp_f32", "v_rsq_f32", "v_sqrt_f32", "v_mov_b32", "v_add_f32", "v_mul_f32", "v_and_b32",
          "v_lshlrev_b32", "v_add_u32", "v_cvt_f64_f32", "v_cvt_f32_f64", "v_or_b32", "v_xor_b32", "v_lshrrev_b32",
          "v_max_f32", "v_sub_u32", "v_min_u32")


def align8(lines):
    import subprocess, tempfile, os
    src = '.amdgcn_target "amdgcn-amd-amdhsa--gfx950"\n.text\n' + "\n".join(lines) + "\n"
    with tempfile.TemporaryDirectory() as td:
        open(td + "/a.s", "w").write(src)
        subprocess.run(["clang", "-x", "assembler", "-target", "amdgcn-amd-amdhsa", "-mcpu=gfx950",
                        "-c", td + "/a.s", "-o", td + "/a.o"], check=True)
        dis = subprocess.run(["llvm-objdump", "-d", "--mcpu=gfx950", td + "/a.o"],
                             capture_output=True, text=True, check=True).stdout
    sizes = []
    for ln in dis.splitlines():
        m = re.search(r"// [0-9A-F]{12}: ((?:[0-9A-F]{8} ?)+)", ln)
        if m:
            sizes.append(4 * len(m.group(1).split()))
    idx = [i for i, l in enumerate(lines) if l.strip() and not l.strip().startswith(";") and not l.strip().endswith(":")]
    assert len(idx) == len(sizes), (len(idx), len(sizes))
    out = list(lines)
    pos = 0
    cand = None
    nfix = nmiss = 0
    for i, sz in zip(idx, sizes):
        mn = lines[i].split()[0]
        if sz == 8 and pos % 8 == 4:
            if cand is not None:
                p = out[cand].split(None, 1)
                out[cand] = "    " + p[0] + "_e64 " + p[1]
                pos += 4
                nfix += 1
            else:
                nmiss += 1
        if sz == 4:
            if mn in _PROMO:
                cand = i
        else:
            if pos % 8 == 0:
                cand = None
        pos += sz
    return out, nfix, nmiss
```

```python
import math
import struct
import sys

from asmlib import Asm, S, V, align8

NAME = "standalone__modern_conv_block_slak__vision"
XB = 28311552

W_OFF = 0
RING = 73728
ROWB = 7168
DWT = RING + 10 * ROWB
ZERO = DWT + 36 * 400
SUM = ZERO + 256
BIAS = SUM + 3072
LDS_END = BIAS + 384
HSH = RING
HOV = HSH + 24 * 2048
TOT = HOV + 8 * 4096
BIAS64 = TOT + 3072
assert BIAS64 + 768 <= ZERO
assert 12 * 2048 <= 4 * ROWB
LDS_BYTES = 163840


def f2u(x):
    return struct.unpack("<I", struct.pack("<f", x))[0]


C1 = 2.0 * math.sqrt(2.0 / math.pi) * math.log2(math.e)
C2 = C1 * 0.044715
AS = C2 ** (1.0 / 3.0)
CC = C1 / AS

vHWL = 0
vLANE = 1
vAA = 2
vAB = 3
vWLO, vWHI = 6, 7
vSUMA = 8
vDMA = 9
vT0 = 10
vSQ = 11
vT1, vT2, vT3, vT4 = 12, 13, 14, 15
vG = 16
vF = 24
vD = (36, 52)
vY = 68
vH1 = 92
vH2 = 188
vCACC = 20
vCBUF = (92, 92, 188)
vHSH = (228, 236, 244, 188, 196, 204)
vOV = 148
vSP = 252
vTR = 255

sW = 3
sB = 4
sSTRIP, sROW0, sBASE0, sCROSS = 5, 6, 7, 8
sRINGW = 11
sX, sDW, sW1, sW2, sG, sBB, sOUT, sDBG, sWS = 16, 18, 20, 22, 24, 26, 28, 30, 32
sCC = 34
srdX, srdW1, srdW2, srdO = 36, 40, 44, 48
sTB = (54, 52, 53)
sM0, sM1, sM2 = 56, 58, 60
sWQ = 62
sRHO = 63
sREP = 64
sREPW = 66
sINIT = 68
sROLE = 69
sTS = 70


def h2reg(g):
    if g in (8, 9):
        return vOV + 8 * (g - 8)
    if g == 10:
        return vD[0]
    if g == 11:
        return vD[0] + 8
    return vH2 + 8 * g


class Gen:
    def __init__(self, debug=None, stamps=False, opts=None):
        self.a = Asm()
        self.debug = debug
        self.stamps = stamps
        self.nts = 0
        self.opts = opts or {}
        self.clk = 's_memrealtime' if self.opts.get('rt') else 's_memtime'
        self.nlab = 0
        self.ntt = 0
        self.where = None
        self.gprio = None
        self.xpol = self.opts.get("xpol", "nt").replace("+", " ").replace("none", "")
        self.spol = self.opts.get("spol", "none").replace("+", " ").replace("none", "")
        self.rpol = self.opts.get("rpol", "none").replace("+", " ").replace("none", "")

    def tstamp(self, where):
        if self.stamps and where is not None and self.opts.get("tst") == where and self.ntt < 14:
            self.ntt += 1
            self.a.raw(f"    {self.clk} {S(sTS + 2 * self.ntt, 2)}")

    def stamp(self, n=None):
        if self.stamps and self.opts.get("tst"):
            self.nts = self.ntt + 1
            return
        if self.stamps:
            if n is None:
                n = self.nts
                self.nts += 1
            assert n < 15
            self.a.wait(lgkm=0)
            self.a(f"{self.clk} {S(sTS + 2 * n, 2)}")
            self.a.wait(lgkm=0)

    def cond(self, sreg, val, fn):
        a = self.a
        self.nlab += 1
        lab = f"L_skip{self.nlab}"
        a(f"s_cmp_lg_u32 {S(sreg)}, {val}")
        a(f"s_cbranch_scc1 {lab}")
        snap = a.snapshot()
        hist = list(a.hist)
        fn()
        a.restore(snap)
        a.hist = self._merge_hist(hist, a.hist)
        a.label(lab)

    def only(self, role, fn):
        self.cond(sROLE, role, fn)

    @staticmethod
    def _merge_hist(skip, taken):
        import copy
        out = []
        for i in skip[-14:] + taken[-14:]:
            j = copy.copy(i)
            j.states = 0
            out.append(j)
        return out

    def dma_rows(self, rows, tag=None, dyn=False, both=None):
        a = self.a
        a("s_mov_b32 exec_hi, 0x00ffffff")
        for rho in rows:
            if dyn:
                a(f"s_add_u32 s12, {S(sRHO)}, {rho}")
                a("s_mul_i32 s9, s12, 73728")
                a(f"s_add_u32 s9, s9, {S(sBASE0)}")
                a(f"s_sub_u32 s10, s9, {384 * 73728 - 6144}")
                a(f"s_cmp_le_u32 {S(sCROSS)}, s12")
                a("s_cselect_b32 s9, s10, s9")
                a(f"s_mul_i32 s10, s12, {ROWB}")
                a(f"s_add_u32 s10, s10, {S(sRINGW)}")
                a(f"s_sub_u32 m0, s10, {10 * ROWB}")
            else:
                a(f"s_add_u32 s9, {S(sBASE0)}, {rho * 73728}")
                a(f"s_sub_u32 s10, s9, {384 * 73728 - 6144}")
                a(f"s_cmp_le_u32 {S(sCROSS)}, {rho}")
                a("s_cselect_b32 s9, s10, s9")
                a(f"s_add_u32 m0, {S(sRINGW)}, {(rho % 10) * ROWB}")
            a(f"v_add_u32 {V(vT0)}, s9, {V(vDMA)}")
            a(f"buffer_load_dwordx4 {V(vT0)}, {S(srdX, 4)}, 0 offen {self.xpol} lds", tag=tag)
            if both is not None:
                a(f"s_sub_u32 m0, m0, {4 * 896}")
                a(f"v_add_u32 {V(vT0)}, s9, {V(both)}")
                a(f"buffer_load_dwordx4 {V(vT0)}, {S(srdX, 4)}, 0 offen {self.xpol} lds", tag=tag)
        a("s_mov_b32 exec_hi, -1")

    def row_lane_offset(self, spiece, dst):
        a = self.a
        a(f"s_mul_i32 s9, {S(spiece)}, 56")
        a(f"v_add_u32 {V(vT0)}, s9, {V(vLANE)}")
        a(f"v_mul_u32_u24 {V(vT1)}, 5042, {V(vT0)}")
        a(f"v_lshrrev_b32 {V(vT1)}, 16, {V(vT1)}")
        a(f"v_mul_u32_u24 {V(vT2)}, 13, {V(vT1)}")
        a(f"v_sub_u32 {V(vT2)}, {V(vT0)}, {V(vT2)}")
        a(f"v_mul_u32_u24 {V(dst)}, 192, {V(vT1)}")
        a(f"v_lshl_add_u32 {V(dst)}, {V(vT2)}, 4, {V(dst)}")
        a(f"v_cmp_lt_u32 vcc, 33, {V(vT1)}")
        a(f"v_cmp_eq_u32 {S(sM0, 2)}, 12, {V(vT2)}")
        a(f"v_mov_b32 {V(vT3)}, 0x40000000")
        a(f"s_or_b64 vcc, vcc, {S(sM0, 2)}")
        a(f"v_cndmask_b32 {V(dst)}, {V(dst)}, {V(vT3)}, vcc")

    def srd(self, srd, p, n):
        a = self.a
        a(f"s_mov_b32 {S(srd)}, {S(p)}")
        a(f"s_mov_b32 {S(srd + 1)}, {S(p + 1)}")
        a(f"s_mov_b32 {S(srd + 2)}, {n}")
        a(f"s_mov_b32 {S(srd + 3)}, 0x00020000")

    def prologue(self):
        a = self.a
        a("s_cmp_ge_u32 s2, 256")
        a("s_cbranch_scc1 L_end")
        a(f"s_load_dwordx16 {S(16, 16)}, s[0:1], 0")
        a(f"s_load_dwordx2 {S(sWS, 2)}, s[0:1], 64")
        if self.stamps:
            a(f"{self.clk} {S(sTS, 2)}")
            self.nts = 1
        a(f"v_and_b32 {V(vLANE)}, 63, v0")
        a(f"v_lshrrev_b32 {V(vT0)}, 6, v0")
        a(f"v_readfirstlane_b32 {S(sW)}, {V(vT0)}")
        a("s_and_b32 s9, s2, 7")
        a("s_lshl_b32 s9, s9, 5")
        a("s_lshr_b32 s10, s2, 3")
        a(f"s_add_u32 {S(sB)}, s9, s10")
        a(f"s_mul_i32 s9, {S(sB)}, 3")
        a(f"s_lshr_b32 {S(sSTRIP)}, s9, 6")
        a(f"s_mul_i32 s9, {S(sB)}, 18")
        a(f"s_mul_i32 s10, {S(sSTRIP)}, 384")
        a(f"s_sub_u32 {S(sROW0)}, s9, s10")
        a(f"s_mul_i32 s9, {S(sROW0)}, 73728")
        a(f"s_mul_i32 s10, {S(sSTRIP)}, 6144")
        a("s_add_u32 s9, s9, s10")
        a(f"s_sub_u32 {S(sBASE0)}, s9, {73728 + 192}")
        a(f"s_sub_u32 {S(sCROSS)}, 385, {S(sROW0)}")
        a(f"s_mul_i32 s9, {S(sW)}, 896")
        a(f"s_add_u32 {S(sRINGW)}, s9, {RING}")
        a(f"s_lshr_b32 {S(sROLE)}, {S(sW)}, 2")
        a(f"s_and_b32 {S(sWQ)}, {S(sW)}, 3")
        self.row_lane_offset(sW, vDMA)
        a("v_add_u32 v22, 512, v0")
        a("v_min_u32 v22, 863, v22")
        a("v_lshlrev_b32 v32, 1, v0")
        a("v_lshlrev_b32 v33, 1, v22")
        self.tstamp("pro")
        self.srd(srdX, sX, XB)
        self.tstamp("pro")
        a(f"global_load_ushort v21, v32, {S(sDW, 2)}")
        a(f"global_load_ushort v27, v33, {S(sDW, 2)}")
        self.dma_rows(range(0, 4), "r0")
        self.tstamp("pro")
        self.srd(srdW1, sW1, 73728)
        for r in range(28, 32):
            a(f"v_mov_b32 {V(r)}, 0")
        a("s_and_b32 s9, s2, 7")
        a("s_lshl_b32 s9, s9, 12")
        a(f"s_add_u32 {S(sREP)}, {S(sWS)}, s9")
        a(f"s_addc_u32 {S(sREP + 1)}, {S(sWS + 1)}, 0")
        a(f"s_lshl_b32 s9, {S(sW)}, 12")
        a(f"s_add_u32 {S(sREPW)}, {S(sWS)}, s9")
        a(f"s_addc_u32 {S(sREPW + 1)}, {S(sWS + 1)}, 0")
        a(f"s_lshr_b32 s9, s2, 3")
        a(f"s_xor_b32 s10, {S(sW)}, 4")
        a(f"s_or_b32 {S(sINIT)}, s9, s10")
        for rnd in range(2):
            e, tap, c, ad, t = (0, 22)[rnd], 17 + 6 * rnd, 18 + 6 * rnd, 19 + 6 * rnd, 20 + 6 * rnd
            a(f"v_mul_u32_u24 {V(tap)}, 683, {V(e)}")
            a(f"v_lshrrev_b32 {V(tap)}, 16, {V(tap)}")
            a(f"v_mul_u32_u24 {V(c)}, 96, {V(tap)}")
            a(f"v_sub_u32 {V(c)}, {V(e)}, {V(c)}")
            a(f"v_mul_u32_u24 {V(t)}, 11, {V(tap)}")
            a(f"v_lshrrev_b32 {V(t)}, 5, {V(t)}")
            a(f"v_mul_u32_u24 {V(ad)}, 400, {V(tap)}")
            a(f"v_mul_u32_u24 {V(t)}, {1200 - 128}, {V(t)}")
            a(f"v_sub_u32 {V(ad)}, {V(ad)}, {V(t)}")
            a(f"v_lshrrev_b32 {V(t)}, 3, {V(c)}")
            a(f"v_mul_u32_u24 {V(t)}, 1200, {V(t)}")
            a(f"v_add_u32 {V(ad)}, {V(ad)}, {V(t)}")
            a(f"v_and_b32 {V(c)}, 7, {V(c)}")
            a(f"v_lshl_add_u32 {V(ad)}, {V(c)}, 4, {V(ad)}")
            a(f"v_add_u32 {V(ad)}, {DWT}, {V(ad)}")
            a(f"v_lshl_add_u32 {V(c)}, {V(c)}, 1, {V(ad)}")
        a("ds_write_b128 v19, v[28:31]")
        a("ds_write_b128 v25, v[28:31]")
        nz = 36 + (LDS_END - ZERO) // 16
        a(f"v_min_u32 {V(vT1)}, {nz - 1}, v0")
        a(f"v_mul_u32_u24 {V(vT2)}, 400, {V(vT1)}")
        a(f"v_add_u32 {V(vT2)}, {DWT + 384}, {V(vT2)}")
        a(f"v_lshlrev_b32 {V(vT3)}, 4, {V(vT1)}")
        a(f"v_add_u32 {V(vT3)}, {ZERO - 36 * 16}, {V(vT3)}")
        a(f"v_cmp_gt_u32 vcc, 36, {V(vT1)}")
        a(f"v_cndmask_b32 {V(vT2)}, {V(vT3)}, {V(vT2)}, vcc")
        a(f"ds_write_b128 {V(vT2)}, v[28:31]")
        self.srd(srdW2, sW2, 73728)
        self.srd(srdO, sOUT, XB)
        a(f"s_mov_b32 {S(sCC)}, {f2u(CC):#x}")
        a(f"s_mov_b32 {S(sCC + 1)}, {f2u(CC):#x}")
        a(f"v_bfe_u32 {V(vT1)}, {V(vLANE)}, 2, 1")
        a(f"v_lshrrev_b32 {V(vT2)}, 4, {V(vLANE)}")
        a(f"v_sub_u32 {V(vT2)}, {V(vT2)}, {V(vT1)}")
        a(f"v_and_b32 {V(vT2)}, 3, {V(vT2)}")
        a(f"v_lshrrev_b32 {V(vT1)}, 1, {V(vLANE)}")
        a(f"v_and_b32 {V(vT1)}, 4, {V(vT1)}")
        a(f"v_and_b32 {V(vT3)}, 3, {V(vLANE)}")
        a(f"v_or_b32 {V(vT1)}, {V(vT1)}, {V(vT3)}")
        a(f"v_cmp_eq_u32 vcc, 3, {V(vT2)}")
        a(f"v_cndmask_b32 {V(vT1)}, {V(vT1)}, v28, vcc")
        a(f"v_lshlrev_b32 {V(vT2)}, 7, {V(vT2)}")
        a(f"v_lshl_add_u32 {V(vAA)}, {V(vT1)}, 4, {V(vT2)}")
        a(f"v_add_u32 {V(vAA)}, {DWT}, {V(vAA)}")
        a(f"v_lshrrev_b32 {V(vT1)}, 5, {V(vLANE)}")
        a(f"v_bfe_u32 {V(vT2)}, {V(vLANE)}, 2, 2")
        a(f"v_lshl_add_u32 v34, {V(vT1)}, 2, {V(vT2)}")
        a(f"v_bfe_u32 {V(vT2)}, {V(vLANE)}, 4, 1")
        a(f"v_lshlrev_b32 v35, 5, {V(vT2)}")
        a(f"v_lshl_add_u32 v35, {V(vT3)}, 3, v35")
        a(f"v_mul_u32_u24 {V(vTR)}, 192, v34")
        a(f"v_add_u32 {V(vTR)}, {V(vTR)}, v35")
        a(f"v_lshlrev_b32 {V(vWLO)}, 4, {V(vLANE)}")
        a(f"v_add_u32 {V(vWHI)}, {6 * 6144}, {V(vWLO)}")
        a(f"v_and_b32 {V(vT2)}, 31, {V(vLANE)}")
        a(f"v_lshlrev_b32 {V(vSUMA)}, 3, {V(vT2)}")
        a(f"v_add_u32 {V(vSUMA)}, {SUM}, {V(vSUMA)}")
        a(f"v_lshlrev_b32 {V(vT1)}, 1, {V(vT1)}")
        a(f"v_bfe_u32 {V(vT3)}, {V(vLANE)}, 1, 2")
        a(f"v_xor_b32 {V(vT1)}, {V(vT1)}, {V(vT3)}")
        a(f"v_lshlrev_b32 {V(vT2)}, 6, {V(vT2)}")
        a(f"v_lshl_add_u32 {V(vHWL)}, {V(vT1)}, 4, {V(vT2)}")

    def tile_setup(self, st):
        a = self.a
        if st == 0:
            a("s_mov_b32 s12, 0")
            a(f"s_lshr_b32 s13, {S(sWQ)}, 1")
        else:
            a(f"s_lshr_b32 s12, {S(sWQ)}, 1")
            a(f"s_add_u32 s12, s12, {3 if st == 1 else 7}")
            a(f"s_lshl_b32 s13, {S(sROLE)}, 1")
            a("s_sub_u32 s12, s12, s13")
            a(f"s_and_b32 s13, {S(sWQ)}, 1")
        a("s_lshl_b32 s12, s12, 1")
        a(f"s_add_u32 s9, {S(sROW0)}, s12")
        a("s_cmp_ge_u32 s9, 384")
        a("s_cselect_b32 s10, 384, 0")
        a("s_cselect_b32 s15, 1, 0")
        a("s_sub_u32 s9, s9, s10")
        a(f"s_add_u32 s15, s15, {S(sSTRIP)}")
        a("s_lshl_b32 s15, s15, 1")
        a("s_add_u32 s15, s15, s13")
        a(f"s_mul_i32 {S(sTB[st])}, s9, 73728")
        a(f"s_mul_i32 s10, s15, {16 * 192}")
        a(f"s_add_u32 {S(sTB[st])}, {S(sTB[st])}, s10")
        a("s_cmp_eq_u32 s9, 0")
        a(f"s_cselect_b32 {S(sM1)}, 0xffff, 0")
        a("s_cmp_eq_u32 s9, 382")
        a(f"s_cselect_b32 {S(sM1 + 1)}, 0xffff0000, 0")
        a("s_cmp_eq_u32 s15, 0")
        a("s_cselect_b32 s10, 0x00010001, 0")
        a(f"s_or_b32 {S(sM0)}, {S(sM1)}, s10")
        a(f"s_or_b32 {S(sM0 + 1)}, {S(sM1 + 1)}, s10")
        a("s_cmp_eq_u32 s15, 23")
        a("s_cselect_b32 s10, 0x80008000, 0")
        a(f"s_or_b32 {S(sM2)}, {S(sM1)}, s10")
        a(f"s_or_b32 {S(sM2 + 1)}, {S(sM1 + 1)}, s10")
        a(f"s_mul_i32 s10, s13, {16 * 208}")
        a(f"s_add_u32 s10, s10, {RING}")
        a(f"v_lshrrev_b32 {V(vT0)}, 4, {V(vLANE)}")
        a(f"v_add_u32 {V(vT0)}, s12, {V(vT0)}")
        a(f"v_subrev_u32 {V(vT1)}, 10, {V(vT0)}")
        a(f"v_min_u32 {V(vT0)}, {V(vT0)}, {V(vT1)}")
        a(f"v_mul_u32_u24 {V(vT0)}, {ROWB}, {V(vT0)}")
        a(f"v_and_b32 {V(vT1)}, 15, {V(vLANE)}")
        a(f"v_mul_u32_u24 {V(vT1)}, 208, {V(vT1)}")
        a(f"v_add3_u32 {V(vT0)}, {V(vT0)}, {V(vT1)}, s10")
        a(f"v_mov_b32 {V(vT2)}, {ZERO}")
        a(f"v_add_u32 {V(vAB + 1)}, 208, {V(vT0)}")
        a(f"v_add_u32 {V(vAB + 2)}, 416, {V(vT0)}")
        a(f"v_cndmask_b32 {V(vAB)}, {V(vT0)}, {V(vT2)}, {S(sM0, 2)}")
        a(f"v_cndmask_b32 {V(vAB + 1)}, {V(vAB + 1)}, {V(vT2)}, {S(sM1, 2)}")
        a(f"v_cndmask_b32 {V(vAB + 2)}, {V(vAB + 2)}, {V(vT2)}, {S(sM2, 2)}")

    def conv(self, st, burst=0):
        a = self.a
        NB = burst or 5
        cb = vCBUF[st]
        steps = [(g, j) for g in range(12) for j in range(3)]

        def rd(n):
            g, j = steps[n]
            b = cb + 8 * (n % NB)
            a(f"ds_read_b128 {V(b, 4)}, {V(vAA)} offset:{(3 * g + j) * 400}")
            a(f"ds_read_b128 {V(b + 4, 4)}, {V(vAB + j)} offset:{g * 16}")

        def mm(n):
            g, j = steps[n]
            b = cb + 8 * (n % NB)
            acc = V(vCACC + 4 * g, 4)
            a(f"v_mfma_f32_16x16x32_bf16 {acc}, {V(b, 4)}, {V(b + 4, 4)}, {acc if j else 0}")

        a("s_setprio 3")
        if burst:
            for n0 in range(0, len(steps), NB):
                ns = range(n0, min(n0 + NB, len(steps)))
                if n0 == 0:
                    for n in ns:
                        rd(n)
                a.wait(lgkm=0)
                for n in ns:
                    mm(n)
                    if n + NB < len(steps) and self.opts.get("bweave", 1):
                        rd(n + NB)
                if not self.opts.get("bweave", 1):
                    for n in ns:
                        if n + NB < len(steps):
                            rd(n + NB)
            return
        for n in range(NB):
            rd(n)
        for n in range(len(steps)):
            mm(n)
            if n + NB < len(steps):
                rd(n + NB)

    def ln(self):
        a = self.a
        s1a, s1b, s2a, s2b = 10, 12, 14, 16
        P = lambda i: V(vCACC + 2 * i, 2)
        a(f"v_pk_add_f32 {V(s1a, 2)}, {P(0)}, {P(1)}")
        a(f"v_pk_mul_f32 {V(s2a, 2)}, {P(0)}, {P(0)}")
        a(f"v_pk_add_f32 {V(s1b, 2)}, {P(2)}, {P(3)}")
        a(f"v_pk_mul_f32 {V(s2b, 2)}, {P(1)}, {P(1)}")
        a(f"v_pk_fma_f32 {V(s2a, 2)}, {P(2)}, {P(2)}, {V(s2a, 2)}")
        a(f"v_pk_fma_f32 {V(s2b, 2)}, {P(3)}, {P(3)}, {V(s2b, 2)}")
        for i in range(4, 24):
            x, y = (s1a, s2a) if i % 2 == 0 else (s1b, s2b)
            a(f"v_pk_add_f32 {V(x, 2)}, {V(x, 2)}, {P(i)}")
            a(f"v_pk_fma_f32 {V(y, 2)}, {P(i)}, {P(i)}, {V(y, 2)}")
        a(f"v_pk_add_f32 {V(s1a, 2)}, {V(s1a, 2)}, {V(s1b, 2)}")
        a(f"v_pk_add_f32 {V(s2a, 2)}, {V(s2a, 2)}, {V(s2b, 2)}")
        a(f"v_add_f32 v10, v10, v11")
        a(f"v_add_f32 v14, v14, v15")
        a(f"v_mov_b32 v11, v10")
        a(f"v_mov_b32 v15, v14")
        a("v_permlane32_swap_b32 v10, v11")
        a("v_permlane32_swap_b32 v14, v15")
        a("v_add_f32 v10, v10, v11")
        a("v_add_f32 v14, v14, v15")
        a(f"v_mul_f32 v10, {f2u(1.0 / 96):#x}, v10")
        a(f"v_mul_f32 v14, {f2u(1.0 / 96):#x}, v14")
        a("v_fma_f32 v14, -v10, v10, v14")
        a("v_max_f32 v14, 0, v14")
        a(f"v_add_f32 v14, {f2u(1e-5):#x}, v14")
        a("v_rsq_f32 v14, v14")
        a(f"v_mul_f32 v12, {f2u(-AS):#x}, v14")
        a("v_mul_f32 v13, -v10, v12")
        for i in range(24):
            a(f"v_pk_fma_f32 {P(i)}, {P(i)}, v[12:13], v[12:13] op_sel:[0,0,1] op_sel_hi:[1,0,1]")
            if i >= 1:
                k = i - 1
                a(f"v_cvt_pk_bf16_f32 {V(vY + k)}, {V(vCACC + 2 * k)}, {V(vCACC + 2 * k + 1)}")
        a(f"v_cvt_pk_bf16_f32 {V(vY + 23)}, {V(vCACC + 46)}, {V(vCACC + 47)}")

    def gemm1_gelu(self, tiles, after=None):
        a = self.a
        o = self.opts
        nt = len(tiles)
        seq = [(n, m) for n in range(nt) for m in range(6)]
        pend = []

        def fb(k):
            return vF + 4 * (k % 3)

        def rd(k):
            if k >= len(seq):
                return
            n, m = seq[k]
            t = tiles[n]
            a(f"ds_read_b128 {V(fb(k), 4)}, {V(t['base'])} offset:{t['off'] + m * 1024}")

        def mm(k):
            n, m = seq[k]
            d = V(vD[n % 2], 16)
            a(f"v_mfma_f32_32x32x16_bf16 {d}, {V(vY + 4 * m, 4)}, {V(fb(k), 4)}, {d if m else 0}")
            rd(k + 3)
            for t in pend:
                a(t)
            pend.clear()

        def window(op, ks):
            n0, n1 = 1, 4
            for i in range(n0):
                a(f"{op} {V(vG + i)}, {V(vG + i)}")
            if len(ks) > 0:
                a.need([("v", fb(k) + i) for k in ks for i in range(4)])
                mm(ks[0])
            for i in range(n0, n1):
                a(f"{op} {V(vG + i)}, {V(vG + i)}")
            if len(ks) > 1:
                mm(ks[1])
            for i in range(n1, 8):
                a(f"{op} {V(vG + i)}, {V(vG + i)}")

        def sumop(n):
            t = tiles[n]
            return f"ds_add_f64 {V(t.get('sa', vSUMA))}, {V(vT1, 2)} offset:{t['soff']}"

        for k in range(3):
            rd(k)
        for k in range(6):
            mm(k)
        if isinstance(self.gprio, tuple):
            a(f"s_setprio {self.gprio[0]}")
            self.only(1, lambda: a(f"s_setprio {self.gprio[1]}"))
        elif self.gprio is not None:
            a(f"s_setprio {self.gprio}")
        for n in range(nt):
            d = vD[n % 2]
            dst = tiles[n]["dst"]
            k0 = 6 * (n + 1)
            nxt = n + 1 < nt
            self.tstamp(self.where)
            for hf in range(2):
                dd = d + 8 * hf
                for i in range(4):
                    a(f"v_pk_fma_f32 {V(vG + 2 * i, 2)}, {V(dd + 2 * i, 2)}, {V(dd + 2 * i, 2)}, {S(sCC, 2)}")
                if hf == 0 and n > 0:
                    a(f"v_cvt_f64_f32 {V(vT1, 2)}, {V(vSQ)}")
                    if nxt:
                        pend.append(sumop(n - 1))
                    else:
                        a(sumop(n - 1))
                for i in range(4):
                    a(f"v_pk_mul_f32 {V(vG + 2 * i, 2)}, {V(vG + 2 * i, 2)}, {V(dd + 2 * i, 2)}")
                if o.get("w2121", 0):
                    wa, wb = ([k0, k0 + 1], [k0 + 2]) if hf == 0 else ([k0 + 3, k0 + 4], [k0 + 5])
                else:
                    wa, wb = ([k0, k0 + 1], [k0 + 2, k0 + 3]) if hf == 0 else ([k0 + 4, k0 + 5], [])
                window("v_exp_f32", wa if nxt else [])
                for i in range(4):
                    a(f"v_pk_add_f32 {V(vG + 2 * i, 2)}, {V(vG + 2 * i, 2)}, 1.0 op_sel_hi:[1,0]")
                window("v_rcp_f32", wb if nxt else [])
                for i in range(4):
                    a(f"v_pk_mul_f32 {V(vG + 2 * i, 2)}, {V(vG + 2 * i, 2)}, {V(dd + 2 * i, 2)}")
                for i in range(4):
                    a(f"v_cvt_pk_bf16_f32 {V(dst + 4 * hf + i)}, {V(vG + 2 * i)}, {V(vG + 2 * i + 1)}")
                for i in range(4):
                    p = V(dst + 4 * hf + i)
                    a(f"v_dot2_f32_bf16 {V(vSQ)}, {p}, {p}, {0 if (hf == 0 and i == 0) else V(vSQ)}")
            if after:
                after(n)
        a(f"v_cvt_f64_f32 {V(vT1, 2)}, {V(vSQ)}")
        a(sumop(nt - 1))

    def dump_hsh(self, first):
        a = self.a
        a(f"s_mul_i32 s9, {S(sWQ)}, {3 * 2048}")
        a(f"s_add_u32 s9, s9, {HSH + (0 if first else 12 * 2048)}")
        a(f"v_add_u32 {V(vT3)}, s9, {V(vHWL)}")
        a(f"v_xor_b32 {V(vT4)}, 16, {V(vT3)}")
        for i in range(3):
            r = vHSH[i + (3 if first else 0)]
            a(f"ds_write_b128 {V(vT3)}, {V(r, 4)} offset:{i * 2048}")
            a(f"ds_write_b128 {V(vT4)}, {V(r + 4, 4)} offset:{i * 2048}")

    def build(self):
        a = self.a
        o = self.opts
        self.prologue()
        self.tstamp("pro")
        ntt0 = self.ntt
        a(f"s_cmp_lg_u32 {S(sROLE)}, 0")
        a("s_cbranch_scc1 L_rstart")
        snap0 = a.snapshot()
        self.tile_setup(0)
        a(f"s_and_b32 s9, {S(sWQ)}, 1")
        a(f"s_mul_i32 s10, s9, {6 * 6144}")
        a(f"v_add_u32 {V(vSP)}, s10, {V(vWLO)}")
        a(f"s_mul_i32 s10, s9, {6 * 256}")
        a(f"v_add_u32 {V(vSP + 1)}, s10, {V(vSUMA)}")
        self.tstamp("pro")
        a("ds_write_b16 v18, v21")
        a("ds_write_b16 v24, v27")
        self.tstamp("pro")
        a.wait(vm=0)
        self.tstamp("pro")
        a.barrier()
        self.tstamp("pro")
        self.stamp(1)
        self.conv(0)
        self.tstamp("pro")
        self.ln()
        self.tstamp("pro")
        a("s_barrier")
        self.tstamp("pro")
        self.stamp(2)

        def after0(n):
            if n == o.get("l_b1b", 2):
                self.tstamp("pro")
                a("s_barrier")
                self.tstamp("pro")

        self.gprio = 1
        self.gemm1_gelu([dict(base=vSP, off=gi * 6144, sa=vSP + 1, soff=gi * 256, dst=vHSH[gi]) for gi in range(6)],
                        after=after0)
        self.stamp(3)
        self.tile_setup(1)
        a(f"s_mov_b32 {S(sRHO)}, 16")
        a.wait(lgkm=0)
        a("s_barrier")
        self.dma_rows(range(12, 16))
        a.settle()
        a("s_branch L_join1")
        a.label("L_rstart")
        a.restore(snap0)
        a.settle()
        ntt1 = self.ntt
        self.ntt = ntt0
        vWA = vSP
        a(f"v_lshrrev_b32 {V(vT1)}, 3, {V(vLANE)}")
        a(f"v_mul_u32_u24 {V(vWA)}, 768, {V(vT1)}")
        a(f"v_bfe_u32 {V(vT1)}, {V(vLANE)}, 4, 1")
        a(f"v_lshlrev_b32 {V(vT1)}, 2, {V(vT1)}")
        a(f"v_and_b32 {V(vT2)}, 7, {V(vLANE)}")
        a(f"v_xor_b32 {V(vT1)}, {V(vT1)}, {V(vT2)}")
        a(f"v_lshl_add_u32 {V(vWA)}, {V(vT1)}, 4, {V(vWA)}")
        a(f"s_and_b32 s12, {S(sWQ)}, 1")
        a(f"s_lshr_b32 s13, {S(sWQ)}, 1")
        a(f"s_mul_i32 s9, s12, {3 * 128}")
        a(f"s_mul_i32 s10, s13, {3 * 12288}")
        a("s_add_u32 s9, s9, s10")
        a(f"v_add_u32 {V(vWA)}, s9, {V(vWA)}")
        a(f"s_mul_i32 s14, s12, {6 * 6144}")
        a(f"s_mul_i32 s10, s13, {3 * 1024}")
        a("s_add_u32 s14, s14, s10")
        units = [(pi, mi) for pi in range(3) for mi in range(3)]
        wl = [(u, e) for u in range(9) for e in range(2)]

        def w1_load(k):
            u, e = wl[k]
            pi, mi = units[u]
            a(f"s_add_u32 m0, s14, {W_OFF + (2 * pi + e) * 6144 + mi * 1024}")
            a(f"s_mov_b32 s9, {mi * 12288 + e * 6144 + pi * 128}")
            a(f"buffer_load_dwordx4 {V(vWA)}, {S(srdW1, 4)}, s9 offen lds")

        K0 = o.get("w1k0", 4)
        for k in range(K0):
            w1_load(k)
        self.tstamp("pro")
        a("ds_write_b16 v18, v21")
        a("ds_write_b16 v24, v27")
        a.wait(vm=K0)
        self.tstamp("pro")
        a.barrier()
        self.tstamp("pro")
        self.stamp(1)
        for k in range(K0, 18):
            w1_load(k)
        self.tstamp("pro")
        vDMA2 = vSP + 1
        self.row_lane_offset(sWQ, vDMA2)
        a(f"v_bfe_u32 {V(vT1)}, {V(vLANE)}, 3, 1")
        a(f"v_lshlrev_b32 {V(vT1)}, 6, {V(vT1)}")
        a(f"v_lshl_add_u32 {V(vT1)}, v34, 7, {V(vT1)}")
        a(f"v_add3_u32 v16, {V(vT1)}, v35, s14")
        a("v_xor_b32 v17, 64, v16")
        a(f"v_add_u32 {V(vT4)}, s14, {V(vWLO)}")
        for pi in range(3):
            a.wait(vm=(12, 10, 8)[pi])
            for mi in range(3):
                for gsel in range(2):
                    for e in range(2):
                        a(f"ds_read_b64_tr_b16 {V(vH2 + 8 * mi + 4 * gsel + 2 * e, 2)}, {V(16 + gsel)} offset:{(2 * pi + e) * 6144 + mi * 1024}")
            if pi < 2:
                self.dma_rows(range(4 + 2 * pi, 6 + 2 * pi), both=vDMA2)
            for mi in range(3):
                for gsel in range(2):
                    a(f"ds_write_b128 {V(vT4)}, {V(vH2 + 8 * mi + 4 * gsel, 4)} offset:{(2 * pi + gsel) * 6144 + mi * 1024}")
            if pi == 0:
                self.tstamp("pro")
        a.wait(lgkm=0)
        self.tstamp("pro")
        a("s_barrier")
        self.tstamp("pro")
        self.stamp(2)
        self.dma_rows(range(8, 12), both=vDMA2)
        self.tile_setup(1)
        a(f"s_mov_b32 {S(sRHO)}, 12")
        a.wait(vm=8)
        self.tstamp("pro")
        a("s_barrier")
        self.tstamp("pro")
        assert self.ntt == ntt1, (self.ntt, ntt1)
        self.stamp(3)

        def zero_replica():
            a(f"v_lshlrev_b32 {V(vT1)}, 4, {V(vLANE)}")
            for i in range(3):
                a(f"global_store_dwordx4 {V(vT1)}, v[28:31], {S(sREP, 2)} offset:{i * 1024} sc0 sc1")

        self.cond(sINIT, 0, zero_replica)
        a.settle()
        a.label("L_join1")
        a.vm, a.lgkm = [], []
        self.nts = 4
        self.stamp()
        self.conv(1, burst=o.get("burst1", 6))
        a.wait(vm=0)
        a("s_barrier")
        self.stamp()
        self.dma_rows(range(4), dyn=True)
        self.ln()

        def own(dstf):
            return [dict(base=vWLO if g < 6 else vWHI, off=(g % 6) * 6144, soff=g * 256, dst=dstf(g))
                    for g in range(12)]

        def raise_flag():
            a(f"v_mov_b32 {V(vT3)}, 1")
            a(f"v_mov_b32 {V(vT4)}, 0")
            a("s_mov_b64 exec, 1")
            a(f"global_atomic_add {V(vT4)}, {V(vT3)}, {S(sDBG, 2)}")
            a("s_mov_b64 exec, -1")

        def r_b4():
            a.wait(vm=0)
            a("s_barrier")
            self.cond(sINIT, 0, raise_flag)
            self.dma_rows(range(16, 20))

        def l_b5():
            a.wait(vm=0)
            a("s_barrier")
            a("s_setprio 2")
            self.dump_hsh(True)

        def after1(n):
            if n == o.get("r_b4", 3):
                self.only(1, r_b4)
            if n == o.get("l_b5", 8):
                self.only(0, l_b5)

        self.where = "g1"
        self.gprio = (1, 2)
        self.gemm1_gelu(own(lambda g: vH1 + 8 * g), after=after1)
        self.tstamp("g1")
        self.stamp()
        self.tile_setup(2)
        self.conv(2, burst=o.get("burst2", 5))
        a.wait(vm=0)
        a("s_barrier")
        self.stamp()
        a.vm = []
        a(f"v_mov_b32 {V(vT0)}, 0")
        a(f"global_load_dword {V(vSP)}, {V(vT0)}, {S(sDBG, 2)} sc1")
        vHW0, vHW1 = vAB, vAB + 1
        a(f"s_lshl_b32 s9, {S(sW)}, 12")
        a(f"s_add_u32 s9, s9, {HOV}")
        a(f"v_add_u32 {V(vHW0)}, s9, {V(vHWL)}")
        a(f"v_xor_b32 {V(vHW1)}, 16, {V(vHW0)}")

        def l_b6():
            self.dump_hsh(False)
            for r in range(4):
                a(f"v_mov_b32 {V(vG + r)}, 0")
            a(f"v_min_u32 {V(vT1)}, 59, {V(vLANE)}")
            a(f"s_mul_i32 s9, {S(sWQ)}, 960")
            a(f"s_add_u32 s9, s9, {TOT}")
            a(f"v_lshl_add_u32 {V(vT1)}, {V(vT1)}, 4, s9")
            a(f"ds_write_b128 {V(vT1)}, {V(vG, 4)}")

        self.only(0, l_b6)
        self.ln()

        def dst2(g):
            return vD[g % 2] if g in (8, 9) else h2reg(g)

        def after2(n):
            if n == 7:
                self.only(1, lambda: a("s_barrier"))
            if n in (8, 9):
                a(f"ds_write_b128 {V(vHW0)}, {V(vD[n % 2], 4)} offset:{(n - 8) * 2048}")
                a(f"ds_write_b128 {V(vHW1)}, {V(vD[n % 2] + 4, 4)} offset:{(n - 8) * 2048}")

        self.where = "g2"
        self.gprio = 1
        self.gemm1_gelu(own(dst2), after=after2)
        self.tstamp("g2")
        self.stamp()
        a.barrier()
        self.stamp()
        self.publish_and_shadow()
        self.phase2(vHW0, vHW1)
        if self.stamps:
            self.stamp()
            self.write_stamps()
        a.label("L_end")
        a("s_endpgm")

    def spin(self, label, ptr, off, expect, first_reg=None):
        a = self.a
        a(f"v_mov_b32 {V(vT0)}, 0")
        a("s_mov_b32 s10, 0")
        if first_reg is not None:
            a(f"v_readfirstlane_b32 s9, {V(first_reg)}")
            a(f"s_cmp_ge_u32 s9, {expect}")
            a(f"s_cbranch_scc1 {label}_done")
        a.label(f"{label}_loop")
        a(f"global_load_dword {V(vT1)}, {V(vT0)}, {S(ptr, 2)} offset:{off} sc1")
        a.wait(vm=0)
        a(f"v_readfirstlane_b32 s9, {V(vT1)}")
        a(f"s_cmp_ge_u32 s9, {expect}")
        a(f"s_cbranch_scc1 {label}_done")
        a("s_sleep 1")
        a("s_add_u32 s10, s10, 1")
        a("s_cmp_lt_u32 s10, 0x40000")
        a(f"s_cbranch_scc1 {label}_loop")
        a.label(f"{label}_done")
        a("s_nop 4")

    def publish_and_shadow(self):
        a = self.a
        self.spin("L_init", sDBG, 0, 8, first_reg=vSP)
        a(f"s_cmp_lg_u32 {S(sW)}, 7")
        a("s_cbranch_scc1 L_nopub")
        snap = a.snapshot()
        a("s_setprio 3")
        a(f"v_lshlrev_b32 {V(vT2)}, 2, {V(vLANE)}")
        a(f"v_lshlrev_b32 {V(vT3)}, 3, {V(vLANE)}")
        a(f"v_add_u32 {V(vT3)}, {SUM}, {V(vT3)}")
        for i in range(6):
            a(f"ds_read_b64 {V(vG + 2 * i, 2)}, {V(vT3)} offset:{i * 512}")
        for i in range(6):
            a(f"v_cvt_f32_f64 {V(vG + i)}, {V(vG + 2 * i, 2)}")
        for i in range(6):
            a(f"global_atomic_add_f32 {V(vT2)}, {V(vG + i)}, {S(sREP, 2)} offset:{i * 256}")
        a.restore(snap)
        a("s_nop 4")
        a.label("L_nopub")
        a(f"s_mul_i32 s14, {S(sW)}, 9216")
        for n in range(9):
            a(f"s_add_u32 m0, s14, {W_OFF + n * 1024}")
            a(f"s_add_u32 s9, s14, {n * 1024}")
            a(f"buffer_load_dwordx4 {V(vWLO)}, {S(srdW2, 4)}, s9 offen lds", tag="w2")
        a(f"v_lshlrev_b32 {V(vT1)}, 2, {V(vLANE)}")
        for i in range(3):
            a(f"global_load_dword {V(vSP + i)}, {V(vT1)}, {S(sG, 2)} offset:{i * 256}")
        vBF = (24, 28, 32)
        a(f"v_lshrrev_b32 {V(vT2)}, 5, {V(vLANE)}")
        a(f"v_lshlrev_b32 {V(vT2)}, 3, {V(vT2)}")
        a(f"s_mul_i32 s9, {S(sW)}, 96")
        a(f"v_add_u32 {V(vT2)}, s9, {V(vT2)}")
        for kk in range(3):
            for e in range(2):
                a(f"global_load_dwordx2 {V(vBF[kk] + 2 * e, 2)}, {V(vT2)}, {S(sBB, 2)} offset:{kk * 32 + e * 16}")
        nyoung = 9 + 3 + 6
        vI = 84
        vDT = (52, 68)
        a(f"v_and_b32 {V(vT1)}, 31, {V(vLANE)}")
        a(f"v_lshrrev_b32 {V(vT2)}, 5, {V(vLANE)}")
        a(f"v_lshlrev_b32 {V(vT2)}, 4, {V(vT2)}")
        a(f"v_sub_u32 {V(vT1)}, {V(vT1)}, {V(vT2)}")
        a(f"v_and_b32 {V(vT2)}, 1, {V(vT1)}")
        a(f"v_lshlrev_b32 {V(vT2)}, 4, {V(vT2)}")
        a(f"v_mov_b32 {V(vT3)}, 0x3f80")
        a(f"v_lshlrev_b32 {V(vT2)}, {V(vT2)}, {V(vT3)}")
        a(f"v_lshrrev_b32 {V(vT1)}, 1, {V(vT1)}")
        a(f"v_mov_b32 {V(vT3)}, 0")
        for n in range(8):
            m = (sM0, sM1, sM2)[n % 3]
            a(f"v_cmp_eq_u32 {S(m, 2)}, {n}, {V(vT1)}")
            if n >= 2:
                k = n - 2
                a(f"v_cndmask_b32 {V(vI + k)}, {V(vT3)}, {V(vT2)}, {S((sM0, sM1, sM2)[k % 3], 2)}")
        for k in (6, 7):
            a(f"v_cndmask_b32 {V(vI + k)}, {V(vT3)}, {V(vT2)}, {S((sM0, sM1, sM2)[k % 3], 2)}")
        tl = [vH1 + 8 * g for g in range(12)] + [h2reg(g) for g in range(12) if g not in (8, 9)]

        def tm(n):
            d = V(vDT[n % 2], 16)
            a(f"v_mfma_f32_32x32x16_bf16 {d}, {V(tl[n], 4)}, {V(vI, 4)}, 0")
            a(f"v_mfma_f32_32x32x16_bf16 {d}, {V(tl[n] + 4, 4)}, {V(vI + 4, 4)}, {d}")

        def signal():
            a.wait(vm=nyoung)
            a(f"v_mov_b32 {V(vT1)}, 1")
            a("s_mov_b64 exec, 1")
            a(f"global_atomic_add {V(vT0)}, {V(vT1)}, {S(sREP, 2)} offset:2048")
            a("s_mov_b64 exec, -1")

        tm(0)
        for n in range(len(tl)):
            if n + 1 < len(tl):
                tm(n + 1)
            d = vDT[n % 2]
            for i in range(8):
                a(f"v_cvt_pk_bf16_f32 {V(tl[n] + i)}, {V(d + 2 * i)}, {V(d + 2 * i + 1)}")
            if n == self.opts.get("sig", 6):
                self.cond(sW, 7, signal)
        fr = [52 + 4 * n for n in range(8)] + [16]
        a(f"v_add_u32 {V(vWHI)}, s14, {V(vTR)}")
        a.wait_vm_tag("w2")
        for n in range(9):
            for e in range(2):
                a(f"ds_read_b64_tr_b16 {V(fr[n] + 2 * e, 2)}, {V(vWHI)} offset:{(16 * (n // 3) + 8 * e) * 192 + (n % 3) * 64}")
        vBA = (vSUMA, vDMA, vSQ)
        for kk in range(3):
            for i in range(4):
                for G in range(3):
                    c = 0 if (kk == 0 and i == 0) else V(vBA[G])
                    a(f"v_dot2_f32_bf16 {V(vBA[G])}, {V(fr[kk * 3 + G] + i)}, {V(vBF[kk] + i)}, {c}")
        a(f"v_and_b32 {V(vT0)}, 31, {V(vLANE)}")
        a(f"v_lshlrev_b32 {V(vT0)}, 3, {V(vT0)}")
        a(f"v_add_u32 {V(vT0)}, {BIAS64}, {V(vT0)}")
        for G in range(3):
            a(f"v_cvt_f64_f32 {V(84 + 2 * G, 2)}, {V(vBA[G])}")
            a(f"ds_add_f64 {V(vT0)}, {V(84 + 2 * G, 2)} offset:{G * 256}")
        self.stamp()
        a.wait(vm=0, lgkm=0)
        self.spin("L_poll", sREPW, 2048, 32)
        self.stamp()
        a(f"v_lshlrev_b32 {V(vT0)}, 3, {V(vLANE)}")
        for i in range(3):
            a(f"global_load_dwordx2 {V(84 + 2 * i, 2)}, {V(vT0)}, {S(sREPW, 2)} offset:{i * 512} sc1")
        a(f"v_lshlrev_b32 {V(vSUMA)}, 4, {V(vLANE)}")
        a(f"v_add_u32 {V(vSUMA)}, {TOT}, {V(vSUMA)}")
        for i in range(6):
            a(f"v_cvt_f64_f32 {V(20 + 2 * i, 2)}, {V(84 + i)}")
            a(f"ds_add_f64 {V(vSUMA)}, {V(20 + 2 * i, 2)} offset:{(i // 2) * 1024 + (i % 2) * 8}")
        a.barrier()
        for i in range(3):
            a(f"ds_read_b128 {V(20 + 4 * i, 4)}, {V(vSUMA)} offset:{i * 1024}")
        a(f"v_min_u32 {V(vDMA)}, 47, {V(vLANE)}")
        a(f"v_lshlrev_b32 {V(vDMA)}, 3, {V(vDMA)}")
        a(f"v_lshlrev_b32 {V(vSQ)}, 1, {V(vDMA)}")
        a(f"v_add_u32 {V(vSQ)}, {BIAS64}, {V(vSQ)}")
        a(f"ds_read_b128 {V(32, 4)}, {V(vSQ)}")
        a(f"v_add_u32 {V(vDMA)}, {BIAS}, {V(vDMA)}")
        for i in range(6):
            a(f"v_cvt_f32_f64 {V(84 + i)}, {V(20 + 2 * i, 2)}")
        a(f"s_mov_b32 s9, {f2u(1.0 / (AS * AS)):#x}")
        a(f"v_mov_b32 {V(vT1)}, {f2u(1e-6):#x}")
        for i in range(6):
            a(f"v_fma_f32 {V(84 + i)}, {V(84 + i)}, s9, {V(vT1)}")
        for i in range(6):
            a(f"v_sqrt_f32 {V(84 + i)}, {V(84 + i)}")
        a(f"v_add_f32 {V(vT2)}, v84, v85")
        a(f"v_add_f32 {V(vT3)}, v86, v87")
        a(f"v_add_f32 {V(vT4)}, v88, v89")
        a(f"v_add_f32 {V(vT2)}, {V(vT2)}, {V(vT3)}")
        a(f"v_add_f32 {V(vT2)}, {V(vT2)}, {V(vT4)}")
        a(f"v_cvt_f32_f64 v90, v[32:33]")
        a(f"v_cvt_f32_f64 v91, v[34:35]")
        modes = ("quad_perm:[1,0,3,2]", "quad_perm:[2,3,0,1]", "row_half_mirror", "row_mirror")
        for k, mode in enumerate(modes):
            a(f"v_add_f32_dpp {V(vT2)}, {V(vT2)}, {V(vT2)} {mode} row_mask:0xf bank_mask:0xf")
            if k < 3:
                a(f"v_lshlrev_b32 {V(20 + 2 * k)}, 16, {V(vSP + k)}")
                a(f"v_and_b32 {V(21 + 2 * k)}, 0xffff0000, {V(vSP + k)}")
        a(f"ds_write_b64 {V(vDMA)}, v[90:91]")
        a(f"v_readlane_b32 s9, {V(vT2)}, 0")
        a(f"v_readlane_b32 s10, {V(vT2)}, 16")
        a(f"v_readlane_b32 s12, {V(vT2)}, 32")
        a(f"v_readlane_b32 s13, {V(vT2)}, 48")
        for i in range(3):
            a(f"v_pk_mul_f32 {V(84 + 2 * i, 2)}, {V(84 + 2 * i, 2)}, {V(20 + 2 * i, 2)}")
        a(f"v_mov_b32 {V(vT2)}, s9")
        a(f"v_add_f32 {V(vT2)}, s10, {V(vT2)}")
        a(f"v_add_f32 {V(vT2)}, s12, {V(vT2)}")
        a(f"v_add_f32 {V(vT2)}, s13, {V(vT2)}")
        a(f"s_mov_b32 s9, {f2u(1.0 / 384):#x}")
        a(f"v_fma_f32 {V(vT2)}, {V(vT2)}, s9, {V(vT1)}")
        a(f"v_rcp_f32 {V(vT2)}, {V(vT2)}")
        a(f"v_mov_b32 {V(vT4)}, {f2u(-1.0 / AS):#x}")
        a(f"v_mul_f32 {V(vT3)}, {V(vT4)}, {V(vT2)}")
        for i in range(3):
            a(f"v_pk_fma_f32 {V(84 + 2 * i, 2)}, {V(84 + 2 * i, 2)}, {V(vT3, 2)}, {V(vT3, 2)} op_sel:[0,0,1] op_sel_hi:[1,0,1]")
        a(f"v_add_u32 {V(vT1)}, {SUM}, {V(vT0)}")
        for i in range(3):
            a(f"ds_write_b64 {V(vT1)}, {V(84 + 2 * i, 2)} offset:{i * 512}")
        a(f"v_lshrrev_b32 {V(vT0)}, 5, {V(vLANE)}")
        a(f"v_lshlrev_b32 {V(vT0)}, 4, {V(vT0)}")
        a(f"s_mul_i32 s9, {S(sW)}, 192")
        a(f"s_add_u32 s9, s9, {SUM}")
        a(f"v_add_u32 {V(vT0)}, s9, {V(vT0)}")
        sv = (20, 28, 84)
        for kk in range(3):
            a(f"ds_read_b128 {V(sv[kk], 4)}, {V(vT0)} offset:{kk * 64}")
            a(f"ds_read_b128 {V(sv[kk] + 4, 4)}, {V(vT0)} offset:{kk * 64 + 32}")
        a(f"v_and_b32 {V(vWHI)}, 35, {V(vLANE)}")
        a(f"v_bfe_u32 {V(vT1)}, {V(vLANE)}, 4, 1")
        a(f"v_lshl_add_u32 {V(vWHI)}, {V(vT1)}, 2, {V(vWHI)}")
        a(f"v_bfe_u32 {V(vT1)}, {V(vLANE)}, 2, 2")
        a(f"v_lshl_add_u32 {V(vWHI)}, {V(vT1)}, 3, {V(vWHI)}")
        a(f"v_lshlrev_b32 {V(vWHI)}, 4, {V(vWHI)}")
        a(f"v_add_u32 {V(vWHI)}, s14, {V(vWHI)}")
        for kk in range(3):
            for G in range(3):
                f = fr[kk * 3 + G]
                for i in range(4):
                    t = vT1 if i % 2 == 0 else vT3
                    a(f"v_lshlrev_b32 {V(t)}, 16, {V(f + i)}")
                    a(f"v_and_b32 {V(t + 1)}, 0xffff0000, {V(f + i)}")
                    a(f"v_pk_mul_f32 {V(t, 2)}, {V(t, 2)}, {V(sv[kk] + 2 * i, 2)}")
                    a(f"v_cvt_pk_bf16_f32 {V(f + i)}, {V(t)}, {V(t + 1)}")
                a(f"ds_write_b128 {V(vWHI)}, {V(f, 4)} offset:{(kk * 3 + G) * 1024}")

    def phase2(self, vHW0, vHW1):
        a = self.a
        vACC = (16, 52, 68)
        vA = (32, 84, 88)
        vALO, vAHI = vWLO, vWHI
        vXA, vSA, vBI, vRD, vHR = vAA, vSUMA, vDMA, vSQ, vAB + 2
        vX1, vX2, vX0 = 92, 116, 140
        a(f"v_bfe_u32 {V(vT1)}, {V(vLANE)}, 3, 1")
        a(f"v_mul_u32_u24 {V(vXA)}, 73728, {V(vT1)}")
        a(f"v_and_b32 {V(vT1)}, 3, {V(vLANE)}")
        a(f"v_bfe_u32 {V(vT2)}, {V(vLANE)}, 2, 1")
        a(f"v_lshl_add_u32 {V(vT1)}, {V(vT2)}, 3, {V(vT1)}")
        a(f"v_bfe_u32 {V(vT2)}, {V(vLANE)}, 4, 1")
        a(f"v_lshl_add_u32 {V(vT1)}, {V(vT2)}, 2, {V(vT1)}")
        a(f"v_mul_u32_u24 {V(vT1)}, 192, {V(vT1)}")
        a(f"v_add_u32 {V(vXA)}, {V(vXA)}, {V(vT1)}")
        a(f"v_lshrrev_b32 {V(vT1)}, 5, {V(vLANE)}")
        a(f"v_lshl_add_u32 {V(vXA)}, {V(vT1)}, 5, {V(vXA)}")
        a(f"v_lshlrev_b32 {V(vBI)}, 6, {V(vT1)}")
        a(f"v_add_u32 {V(vBI)}, {BIAS}, {V(vBI)}")
        a(f"v_mul_u32_u24 {V(vSA)}, 73728, {V(vT1)}")
        a(f"v_bfe_u32 {V(vT1)}, {V(vLANE)}, 2, 2")
        a(f"v_bfe_u32 {V(vT2)}, {V(vLANE)}, 4, 1")
        a(f"v_lshl_add_u32 {V(vT1)}, {V(vT2)}, 3, {V(vT1)}")
        a(f"v_mul_u32_u24 {V(vT1)}, 192, {V(vT1)}")
        a(f"v_add_u32 {V(vSA)}, {V(vSA)}, {V(vT1)}")
        a(f"v_and_b32 {V(vT1)}, 3, {V(vLANE)}")
        a(f"v_lshl_add_u32 {V(vSA)}, {V(vT1)}, 4, {V(vSA)}")
        a(f"v_bfe_u32 {V(vT2)}, {V(vLANE)}, 3, 2")
        a(f"v_xor_b32 {V(vT1)}, {V(vT1)}, {V(vT2)}")
        a(f"v_lshrrev_b32 {V(vT2)}, 2, {V(vLANE)}")
        a(f"v_lshlrev_b32 {V(vT2)}, 6, {V(vT2)}")
        a(f"v_lshl_add_u32 {V(vRD)}, {V(vT1)}, 4, {V(vT2)}")
        a(f"s_lshl_b32 s15, {S(sW)}, 12")
        a(f"s_add_u32 s15, s15, {HOV}")
        a(f"v_add_u32 {V(vRD)}, s15, {V(vRD)}")
        a(f"v_lshrrev_b32 {V(vT1)}, 5, {V(vLANE)}")
        a(f"v_bfe_u32 {V(vT2)}, {V(vLANE)}, 2, 2")
        a(f"v_lshl_add_u32 {V(vT1)}, {V(vT1)}, 2, {V(vT2)}")
        a(f"v_bfe_u32 {V(vT2)}, {V(vT1)}, 1, 2")
        a(f"v_bfe_u32 {V(vT3)}, {V(vLANE)}, 4, 1")
        a(f"v_bfe_u32 {V(vT4)}, {V(vLANE)}, 1, 1")
        a(f"v_lshl_add_u32 {V(vT3)}, {V(vT3)}, 1, {V(vT4)}")
        a(f"v_xor_b32 {V(vT2)}, {V(vT2)}, {V(vT3)}")
        a(f"v_lshlrev_b32 {V(vT1)}, 6, {V(vT1)}")
        a(f"v_lshl_add_u32 {V(vT1)}, {V(vT2)}, 4, {V(vT1)}")
        a(f"v_and_b32 {V(vT2)}, 1, {V(vLANE)}")
        a(f"v_lshl_add_u32 {V(vHR)}, {V(vT2)}, 3, {V(vT1)}")
        a(f"v_add_u32 {V(vT0)}, s15, {V(vHR)}")
        a(f"s_min_u32 s9, {S(sW)}, 5")
        a("s_cmp_ge_u32 s9, 3")
        a("s_cselect_b32 s12, 1, 0")
        a("s_mul_i32 s13, s12, 3")
        a("s_sub_u32 s13, s9, s13")
        a(f"s_mul_i32 s9, {S(sROW0)}, 73728")
        a(f"s_mul_i32 s10, {S(sSTRIP)}, 6144")
        a("s_add_u32 s9, s9, s10")
        a("s_mul_i32 s10, s12, 3072")
        a("s_add_u32 s9, s9, s10")
        a("s_lshl_b32 s10, s13, 6")
        a(f"s_add_u32 {S(sTB[0])}, s9, s10")
        a(f"s_mul_i32 s9, s12, {6 * 2048}")
        a(f"s_add_u32 s9, s9, {HSH}")
        a(f"v_add_u32 {V(vHR)}, s9, {V(vHR)}")
        a.barrier()
        a("s_setprio 0")
        a(f"v_add_u32 {V(vAHI)}, {36 * 1024}, {V(vALO)}")
        self.stamp()
        cnt = [0]

        def xload(dst, tb, G):
            for e in range(2):
                a(f"buffer_load_dwordx4 {V(dst + 4 * e, 4)}, {V(vXA)}, {S(srdX, 4)}, {S(tb)} offen offset:{G * 64 + e * 16} {self.rpol}")

        def binit(acc, G):
            for i in range(4):
                a(f"ds_read_b128 {V(acc + 4 * i, 4)}, {V(vBI)} offset:{G * 128 + i * 16}")

        def ard(buf, ks, G):
            o = (ks * 3 + G) * 1024
            base, o = (vALO, o) if ks < 12 else (vAHI, o - 36 * 1024)
            a(f"ds_read_b128 {V(buf, 4)}, {V(base)} offset:{o}")

        def epilogue(acc, x, tb, G):
            par = cnt[0] % 2
            cnt[0] += 1
            it = []
            for i in range(8):
                t = vT1 if i % 2 == 0 else vT3
                it.append(f"v_lshlrev_b32 {V(t)}, 16, {V(x + i)}")
                it.append(f"v_and_b32 {V(t + 1)}, 0xffff0000, {V(x + i)}")
                it.append(f"v_add_f32 {V(t)}, {V(t)}, {V(acc + 2 * i)}")
                it.append(f"v_add_f32 {V(t + 1)}, {V(t + 1)}, {V(acc + 2 * i + 1)}")
                it.append(f"v_cvt_pk_bf16_f32 {V(acc + i)}, {V(t)}, {V(t + 1)}")
            wr = [f"ds_write_b128 {V(vHW0)}, {V(acc, 4)} offset:{par * 2048}",
                  f"ds_write_b128 {V(vHW1)}, {V(acc + 4, 4)} offset:{par * 2048}"]
            rd = [f"ds_read_b128 {V(acc + 8 + 4 * i, 4)}, {V(vRD)} offset:{par * 2048 + i * 1024}" for i in range(2)]
            st = [f"buffer_store_dwordx4 {V(acc + 8 + 4 * i, 4)}, {V(vSA)}, {S(srdO, 4)}, {S(tb)} offen offset:{i * 768 + G * 64} {self.spol}"
                  for i in range(2)]
            return it, wr + rd, st

        def weave(eps, ngaps, start=2):
            gaps = [[] for _ in range(ngaps + 8)]
            g = start
            per = self.opts.get("fill", 5)
            for it, ds, st in eps:
                for k in range(0, len(it), per):
                    gaps[g].extend(it[k:k + per])
                    g += 1
                gaps[g] = ds + gaps[g]
                gaps[g + 4] = st + gaps[g + 4]
            left = [i for gl in gaps[ngaps:] for i in gl]
            return gaps[:ngaps], left

        self.tstamp("p2")
        seq = [(ks, G) for ks in range(24) for G in range(3)]
        for k in range(3):
            ard(vA[k], *seq[k])
        for G in range(3):
            binit(vACC[G], G)
        vACX = 164
        for k, (ks, G) in enumerate(seq):
            acc = V(vACC[G], 16)
            a(f"v_mfma_f32_32x32x16_bf16 {acc}, {V(vA[k % 3], 4)}, {V(vH1 + 4 * ks, 4)}, {acc}")
            if k + 3 < len(seq):
                ard(vA[k % 3], *seq[k + 3])
            else:
                ard(vA[k % 3], k + 3 - len(seq), 0)
            if G == 2:
                if ks in (1, 3, 5):
                    xload(vX1 + 8 * (ks // 2), sTB[1], ks // 2)
                if ks in (7, 9, 11):
                    xload(vX2 + 8 * ((ks - 6) // 2), sTB[2], (ks - 6) // 2)
                if ks == 13:
                    xload(vX0, sTB[0], 0)
                if ks in (15, 17):
                    g = (ks - 15) // 2
                    for i in range(4):
                        a(f"ds_read_b64_tr_b16 {V(vOV + 8 * g + 2 * i, 2)}, {V(vT0)} offset:{g * 2048 + i * 512}")
                if ks == 21:
                    binit(vACX, 0)
        self.tstamp("p2")

        accs = (vACX, vACC[0], vACC[1])
        eps = [epilogue(vACC[G], vX1 + 8 * G, sTB[1], G) for G in range(3)]
        gaps, left = weave(eps, 72, start=1)
        assert not left
        for G in range(2):
            g2, left = weave([epilogue(accs[G], vX2 + 8 * G, sTB[2], G)], 72, start=max(24 * (G + 1) + 2, 30))
            assert not left
            for k in range(72):
                gaps[k].extend(g2[k])
        vBB = 92
        vA2 = (vA[0], vA[1], vA[2], 180, 184, 116)

        def brd(ks):
            ng = ks // 2
            i6 = ng % 6
            off = ((ng // 6) * 3 + i6 % 3) * 2048 + (12 * 2048 if i6 < 3 else 0) + (ks % 2) * 1024
            for e in range(2):
                a(f"ds_read_b64_tr_b16 {V(vBB + 4 * (ks % 4) + 2 * e, 2)}, {V(vHR)} offset:{off + e * 512}")

        for k in range(72):
            G, ks = k // 24, k % 24
            ac = V(accs[G], 16)
            a(f"v_mfma_f32_32x32x16_bf16 {ac}, {V(vA[k % 3], 4)}, {V(h2reg(ks // 2) + 4 * (ks % 2), 4)}, {ac}")
            if k + 3 < 72:
                ard(vA[k % 3], (k + 3) % 24, (k + 3) // 24)
            if ks == 20 and G < 2:
                binit(accs[G + 1], G + 1)
            for t in gaps[k]:
                a(t)
            if ks == 23:
                self.tstamp("p2")
        last = epilogue(accs[2], vX2 + 16, sTB[2], 2)
        a(f"s_cmp_ge_u32 {S(sW)}, 6")
        a("s_cbranch_scc1 L_noshare")
        snap = a.snapshot()
        hist = list(a.hist)
        a("s_lshl_b32 s9, s13, 10")
        a(f"v_add_u32 {V(vALO)}, s9, {V(vALO)}")
        a(f"v_add_u32 {V(vAHI)}, s9, {V(vAHI)}")
        a("s_lshl_b32 s9, s13, 7")
        a(f"v_add_u32 {V(vBI)}, s9, {V(vBI)}")
        vA4 = (vA[0], vA[1], vA[2], 180)
        binit(vACC[2], 0)
        for ks in range(3):
            ard(vA4[ks], ks, 0)
            brd(ks)
        it, ds, st = last
        for t in it[:20]:
            a(t)
        ard(vA4[3], 3, 0)
        brd(3)
        gaps, left = weave([(it[20:], ds, st)], 24, start=0)
        assert not left
        ac = V(vACC[2], 16)
        for ks in range(24):
            a(f"v_mfma_f32_32x32x16_bf16 {ac}, {V(vA4[ks % 4], 4)}, {V(vBB + 4 * (ks % 4), 4)}, {ac}")
            if ks + 4 < 24:
                ard(vA4[ks % 4], ks + 4, 0)
                brd(ks + 4)
            for t in gaps[ks]:
                a(t)
        self.tstamp("p2")
        for part in epilogue(vACC[2], vX0, sTB[0], 0):
            for t in part:
                a(t)
        a("s_branch L_fin")
        a.label("L_noshare")
        a.restore(snap)
        a.hist = hist
        for part in last:
            for t in part:
                a(t)
        a.label("L_fin")
        a.settle()
        self.tstamp("p2")

    def write_stamps(self):
        a = self.a
        a.wait(vm=0, lgkm=0)
        a(f"{self.clk} {S(sTS + 2 * self.nts, 2)}")
        self.nts += 1
        a.wait(lgkm=0)
        a(f"s_lshl_b32 s9, {S(sB)}, 3")
        a(f"s_add_u32 s9, s9, {S(sW)}")
        a("s_lshl_b32 s9, s9, 6")
        a(f"s_add_u32 s9, s9, {1 << 19}")
        a(f"v_mov_b32 {V(vT0)}, s9")
        a("s_mov_b64 exec, 1")
        for i in range(self.nts):
            if i:
                a(f"s_sub_u32 s10, {S(sTS + 2 * i)}, {S(sTS)}")
                a(f"v_mov_b32 {V(vT1)}, s10")
            else:
                a(f"v_mov_b32 {V(vT1)}, {S(sTS)}")
            a(f"global_store_dword {V(vT0)}, {V(vT1)}, {S(sWS, 2)} offset:{i * 4}")
            if self.opts.get("dbgst") and i:
                a(f"s_xor_b32 s12, s2, 100")
                a(f"s_or_b32 s12, s12, {S(sW)}")
                a("s_cmp_lg_u32 s12, 0")
                a(f"s_cbranch_scc1 L_dbg{i}")
                a(f"v_mov_b32 {V(vT2)}, 0")
                a(f"global_store_dword {V(vT2)}, {V(vT1)}, {S(sDBG, 2)} offset:{i * 4}")
                a.label(f"L_dbg{i}")
        a.wait(vm=0)


HEADER = """; Kernarg layout for this problem (72 bytes, ptrs only, base s[0:1]):
; @launch grid=(256,1,1) block=(512,1,1) lds={lds}
.amdgcn_target "amdgcn-amd-amdhsa--gfx950"
.text
.globl {name}_kernel
.p2align 8
.type {name}_kernel,@function
{name}_kernel:
"""

FOOTER = """.section .rodata,"a"
.p2align 6
.amdhsa_kernel {name}_kernel
  .amdhsa_next_free_vgpr 256
  .amdhsa_next_free_sgpr 102
  .amdhsa_accum_offset 256
  .amdhsa_group_segment_fixed_size 0
  .amdhsa_kernarg_size 72
  .amdhsa_user_sgpr_count 2
  .amdhsa_user_sgpr_kernarg_segment_ptr 1
  .amdhsa_system_sgpr_workgroup_id_x 1
.end_amdhsa_kernel
"""


def generate(path, **kw):
    g = Gen(**kw)
    g.build()
    lines, nfix, nmiss = align8(g.a.out)
    txt = HEADER.format(name=NAME, lds=LDS_BYTES) + "\n".join(lines) + "\n" + FOOTER.format(name=NAME)
    open(path, "w").write(txt)
    print(path, "instr counts:", g.a.count, "nop states:", g.a.nops, "max vgpr:", g.a.maxv, "align fix/miss:", nfix,
          nmiss, file=sys.stderr)


if __name__ == "__main__":
    import argparse
    ap = argparse.ArgumentParser()
    ap.add_argument("-o", default=f"cdna_kernels/{NAME}.s")
    ap.add_argument("--opt", action="append", default=[])
    args = ap.parse_args()
    opts = {}
    for o in args.opt:
        k, v = o.split("=")
        try:
            v = int(v)
        except ValueError:
            pass
        opts[k] = v
    generate(args.o, opts=opts)
```
